```python
import torch

def _softmax(x, axis=-1):
    return torch.softmax(x, dim=axis)

def _gelu(x):
    return torch.nn.functional.gelu(x, approximate='tanh')

def _silu(x):
    return torch.nn.functional.silu(x)

def _sigmoid(x):
    return torch.sigmoid(x)

def _layernorm(x, axis=-1, eps=1e-05):
    m = x.mean(dim=axis, keepdim=True)
    v = x.var(dim=axis, keepdim=True, unbiased=False)
    return (x - m) / torch.sqrt(v + eps)

def _scatter_add(tgt, idx, src, axis=0):
    return tgt.clone().index_add_(axis, idx, src)

def _segment_sum(src, seg, n):
    out = torch.zeros((n,) + src.shape[1:], dtype=src.dtype)
    return out.index_add_(0, seg, src)

def _pad(x, pw):
    flat = tuple((v for pair in reversed(pw) for v in pair))
    return torch.nn.functional.pad(x, flat)
kernel_name = 'parallel_sum__softmax_full_mha__mixer_gmlp__prompt'

def setup_inputs():

    _w = lambda a: (lambda t: t.to(torch.bfloat16) if t.is_floating_point() else t)(torch.as_tensor(a))

    def _A_setup():
        B, S, D = (1, 2048, 640)
        return {'x': _w((lambda *s: torch.randn(*s, dtype=torch.bfloat16) * 0.05)(B, S, D)), 'wqkv': _w((lambda *s: torch.randn(*s, dtype=torch.bfloat16) * 0.2)(D, 3 * D)), 'wo': _w((lambda *s: torch.randn(*s, dtype=torch.bfloat16) * 0.1)(D, D))}
    _A_in = _A_setup()

    def _B_setup():
        B, S, D, F = (1, 2048, 640, 1536)
        Fh = F // 2
        return {'x': _w((lambda *s: torch.randn(*s, dtype=torch.bfloat16) * 0.05)(B, S, D)), 'w_in': _w((lambda *s: torch.randn(*s, dtype=torch.bfloat16) * 0.8)(D, 2 * Fh)), 'w_sp': _w(0.01 * (lambda *s: torch.randn(*s, dtype=torch.bfloat16) * 0.8)(S, S)), 'b_sp': _w(1.0 + 0.01 * (lambda *s: torch.randn(*s, dtype=torch.bfloat16) * 0.2)(S)), 'w_out': _w((lambda *s: torch.randn(*s, dtype=torch.bfloat16) * 0.2)(Fh, D))}
    _B_in = _B_setup()
    return {'A_x': _A_in['x'], 'A_wqkv': _A_in['wqkv'], 'A_wo': _A_in['wo'], 'B_x': _B_in['x'], 'B_w_in': _B_in['w_in'], 'B_w_sp': _B_in['w_sp'], 'B_b_sp': _B_in['b_sp'], 'B_w_out': _B_in['w_out']}

def reference(A_x, A_wqkv, A_wo, B_x, B_w_in, B_w_sp, B_b_sp, B_w_out):

    def _A_ref(x, wqkv, wo):
        B, S, D = x.shape
        H = 32
        Dh = D // H
        qkv = (lambda x, *d: x.permute(*d))((x @ wqkv).reshape(B, S, 3, H, Dh), 2, 0, 3, 1, 4)
        q, k, v = (qkv[0], qkv[1], qkv[2])
        scale = Dh ** (-0.5)
        scores = torch.einsum('bhqd,bhkd->bhqk', q, k) * scale
        p = _softmax(scores, axis=-1)
        o = torch.einsum('bhqk,bhkd->bhqd', p, v)
        return (lambda x, *d: x.permute(*d))(o, 0, 2, 1, 3).reshape(B, S, D) @ wo

    def _B_ref(x, w_in, w_sp, b_sp, w_out):
        B, S, D = x.shape
        F = w_in.shape[-1]
        Fh = F // 2
        z = _gelu(torch.einsum('bsd,df->bsf', x, w_in))
        z1 = z[..., :Fh].clone()
        z2 = _layernorm(z[..., Fh:], axis=-1)
        g = torch.einsum('ts,bsf->btf', w_sp, z2) + b_sp[None, :, None]
        return torch.einsum('bsf,fd->bsd', z1 * g, w_out)
    x = A_x
    xn = _layernorm(x, axis=-1)
    return x + _A_ref(xn, A_wqkv, A_wo) + _B_ref(xn, B_w_in, B_w_sp, B_b_sp, B_w_out)
```

```python
class Asm:
    def __init__(self):
        self.L = []
        self._uid = 0
    def __call__(self, s):
        for line in s.split("\n"):
            line = line.strip()
            if line:
                self.L.append("    " + line)
    def label(self, l):
        self.L.append(l + ":")
    def raw(self, s):
        self.L.append(s)
    def uid(self, p="L"):
        self._uid += 1
        return f"{p}_{self._uid}"
    def text(self):
        return "\n".join(self.L) + "\n"

def v(i, n=1):
    return f"v{i}" if n == 1 else f"v[{i}:{i+n-1}]"
def s(i, n=1):
    return f"s{i}" if n == 1 else f"s[{i}:{i+n-1}]"

class Regs:
    def __init__(self, start, limit):
        self.n = start; self.limit = limit; self.names = {}
    def alloc(self, name, cnt=1, align=1):
        if cnt >= 2 and align < 2: align = 2
        self.n = (self.n + align - 1) // align * align
        r = self.n
        self.n += cnt
        assert self.n <= self.limit, f"out of registers at {name}: {self.n}"
        self.names[name] = (r, cnt)
        return r

def srd(a, d, lo, hi, nbytes):
    a(f"s_mov_b32 s{d}, s{lo}")
    a(f"s_and_b32 s{d+1}, s{hi}, 0xffff")
    a(f"s_mov_b32 s{d+2}, {nbytes}")
    a(f"s_mov_b32 s{d+3}, 0x00020000")

def kernel_begin(a, name):
    a.raw(f".globl {name}")
    a.raw(".p2align 8")
    a.raw(f".type {name},@function")
    a.label(name)

def descriptor(name, vgpr, sgpr=102, accum=None):
    if accum is None: accum = (vgpr + 3) // 4 * 4
    return f""".p2align 6
.amdhsa_kernel {name}
  .amdhsa_next_free_vgpr {vgpr}
  .amdhsa_next_free_sgpr {sgpr}
  .amdhsa_accum_offset {accum}
  .amdhsa_group_segment_fixed_size 0
  .amdhsa_kernarg_size 88
  .amdhsa_user_sgpr_count 2
  .amdhsa_user_sgpr_kernarg_segment_ptr 1
  .amdhsa_system_sgpr_workgroup_id_x 1
.end_amdhsa_kernel
"""
import struct
def f32bits(x):
    return struct.unpack("<I", struct.pack("<f", x))[0]
def fhex(x):
    return f"0x{f32bits(x):08x}"

def sel(a, d, A, B):
    a(f"s_mov_b32 s{d}, {B}")
    a(f"s_cmov_b32 s{d}, {A}")

import os
PROFILE = bool(int(os.environ.get("PROFILE", "0")))
WS_PROF = 0x1A00000
def prof_begin(a):
    if not PROFILE: return
    a("s_memrealtime s[84:85]")
    a("s_memtime s[86:87]")
def prof_mark(a, i):
    if not PROFILE: return
    a(f"s_memtime s[{88+2*i}:{89+2*i}]")
def prof_end(a, kidx, srdws, wave_sgpr_expr=None):
    if PROFILE:
        a("s_waitcnt vmcnt(0) lgkmcnt(0)")
        a("s_memrealtime s[80:81]")
        a("s_memtime s[82:83]")
        a("s_mov_b64 exec, 1")
        a("s_waitcnt lgkmcnt(0)")
        a("v_mov_b32 v4, s84")
        a("v_mov_b32 v5, s80")
        a("s_sub_u32 s82, s82, s86")
        a("v_mov_b32 v6, s82")
        a("s_sub_u32 s88, s88, s86")
        a("v_mov_b32 v7, s88")
        a("s_sub_u32 s90, s90, s86")
        a("s_sub_u32 s92, s92, s86")
        a("s_sub_u32 s94, s94, s86")
        a("v_mov_b32 v8, s90")
        a("v_mov_b32 v9, s92")
        a("v_mov_b32 v10, s94")
        a("v_mov_b32 v11, 0")
        a("v_lshrrev_b32 v3, 6, v0")
        a("v_lshlrev_b32 v3, 5, v3")
        a("s_lshl_b32 s80, s2, 8")
        a(f"s_add_u32 s80, s80, {WS_PROF + kidx*0x20000}")
        a(f"buffer_store_dwordx4 v[4:7], v3, s[{srdws}:{srdws+3}], s80 offen")
        a(f"buffer_store_dwordx4 v[8:11], v3, s[{srdws}:{srdws+3}], s80 offen offset:16")
    a("s_endpgm")
```

```python
from asmlib import *
from layout import *
import math, os

XBUF = [0, 16384, 32768]
WBUF = [49152, 49152 + 32768, 49152 + 65536]
STAT = 147456
K1_LDS = STAT + 8192

def gen_k1(a):
    kernel_begin(a, "k1_kernel")
    a("s_cmp_ge_u32 s2, 256")
    a("s_cbranch_scc1 K1_exit")
    prof_begin(a)
    a("s_load_dwordx4 s[4:7], s[0:1], 0")
    a("s_load_dwordx2 s[8:9], s[0:1], 32")
    a("s_load_dwordx2 s[10:11], s[0:1], 80")
    a("v_lshrrev_b32 v1, 6, v0")
    a("v_and_b32 v2, 63, v0")
    a("v_readfirstlane_b32 s12, v1")
    a("s_and_b32 s15, s2, 1")
    a("s_lshl_b32 s13, s15, 3")
    a("s_bfe_u32 s15, s2, 0x30003")
    a("s_add_u32 s13, s13, s15")
    a("s_bfe_u32 s14, s2, 0x20001")
    a("s_lshl_b32 s14, s14, 2")
    a("s_lshr_b32 s15, s2, 6")
    a("s_add_u32 s14, s14, s15")
    a("s_waitcnt lgkmcnt(0)")
    srd(a, 16, 4, 5, 2048 * 640 * 2)
    srd(a, 24, 10, 11, WS_SIZE)
    a("s_cmp_lt_u32 s14, 8")
    a("s_cselect_b32 s20, s6, s8")
    a("s_cselect_b32 s21, s7, s9")
    a("s_and_b32 s21, s21, 0xffff")
    a("s_cmp_lt_u32 s14, 8")
    sel(a, 22, 640*1920*2, 640*1536*2)
    a("s_mov_b32 s23, 0x00020000")
    sel(a, 28, 3840, 3072)
    a("s_mul_i32 s29, s14, 480")
    a("s_and_b32 s30, s29, 63")
    a("s_and_b32 s29, s29, 0xffffffc0")
    a("s_sub_u32 s15, s14, 8")
    a("s_mul_i32 s15, s15, 384")
    a("s_cmp_lt_u32 s14, 8")
    a("s_cselect_b32 s29, s29, s15")
    a("s_cselect_b32 s30, s30, 0")
    a("s_cmp_ge_u32 s12, 4")
    a("s_cbranch_scc0 K1_compute")
    a("s_sub_u32 s12, s12, 4")
    VX, VW = 4, 8
    a("v_lshrrev_b32 v3, 3, v2")
    a("v_lshrrev_b32 v12, 4, v2")
    a("v_and_b32 v13, 7, v2")
    a("v_lshrrev_b32 v14, 5, v2")
    a("v_and_b32 v15, 31, v2")
    a("s_movk_i32 s15, 1280")
    for jj in range(4):
        a(f"v_add_u32 v16, {8*jj}, v3")
        a(f"v_mul_lo_u32 v16, v16, s15")
        a(f"v_add_u32 v17, {4*jj}, v12")
        a(f"v_and_b32 v17, 7, v17")
        a(f"v_xor_b32 v17, v17, v13")
        a(f"v_lshl_add_u32 v16, v17, 4, v16")
        a(f"v_subrev_u32 v{VX+jj}, {1024*jj}, v16")
        a(f"v_add_u32 v16, {2*jj}, v14")
        a(f"v_and_b32 v17, 3, v16")
        a(f"v_mul_lo_u32 v16, v16, s28")
        a(f"v_lshlrev_b32 v17, 2, v17")
        a(f"v_xor_b32 v17, v17, v15")
        a(f"v_lshl_add_u32 v16, v17, 4, v16")
        a(f"v_subrev_u32 v{VW+jj}, {1024*jj}, v16")
    a("s_lshl_b32 s31, s13, 7")
    a("s_lshl_b32 s15, s12, 5")
    a("s_add_u32 s31, s31, s15")
    a("s_mul_i32 s31, s31, 1280")
    a("s_lshl_b32 s15, s12, 4")
    a("s_mul_i32 s32, s15, s28")
    a("s_add_u32 s32, s32, s29")
    a("s_lshl_b32 s33, s28, 3")
    a("s_lshl_b32 s34, s28, 6")
    a("s_lshl_b32 s35, s12, 12")
    a("s_lshl_b32 s36, s12, 13")
    a(f"s_add_u32 s36, s36, {WBUF[0]}")
    a("s_mov_b32 s37, 0")
    def issue():
        if os.environ.get("K1_NODMA"): return
        a("s_mov_b32 m0, s35")
        a("s_add_u32 s38, s32, s33")
        for jj in range(4):
            a(f"buffer_load_dwordx4 v{VX+jj}, s[16:19], s31 offen offset:{1024*jj} lds")
        a("s_mov_b32 m0, s36")
        a("s_add_u32 s31, s31, 128")
        for jj in range(4):
            a(f"buffer_load_dwordx4 v{VW+jj}, s[20:23], s32 offen offset:{1024*jj} lds")
        a("s_add_u32 m0, s36, 4096")
        a("s_add_u32 s32, s32, s34")
        for jj in range(4):
            a(f"buffer_load_dwordx4 v{VW+jj}, s[20:23], s38 offen offset:{1024*jj} lds")
        a("s_add_u32 s37, s37, 1")
        a("s_cmp_eq_u32 s37, 3")
        a("s_movk_i32 s39, 0x4000")
        a("s_cmovk_i32 s39, 0x8000")
        a("s_cmov_b32 s37, 0")
        a("s_add_u32 s35, s35, s39")
        a("s_lshl_b32 s39, s39, 1")
        a("s_add_u32 s36, s36, s39")
    a("s_mov_b32 s40, 0")
    a.label("K1_ld_pro")
    issue()
    a("s_add_u32 s40, s40, 1")
    a("s_cmp_lt_u32 s40, 3")
    a("s_cbranch_scc1 K1_ld_pro")
    a("s_waitcnt vmcnt(24)")
    a("s_barrier")
    a("s_mov_b32 s40, 1")
    a.label("K1_ld_loop")
    a("s_waitcnt vmcnt(12)")
    a("s_barrier")
    issue()
    a("s_add_u32 s40, s40, 1")
    a("s_cmp_lt_u32 s40, 8")
    a("s_cbranch_scc1 K1_ld_loop")
    a("s_waitcnt vmcnt(12)")
    a("s_barrier")
    a("s_waitcnt vmcnt(0)")
    a("s_barrier")
    prof_end(a, 0, 24)

    a.label("K1_compute")
    R = Regs(3, 256)
    T = [R.alloc(f"t{i}") for i in range(9)]
    XA = R.alloc("xa", 4)
    WE = R.alloc("we", 4)
    WO = R.alloc("wo", 4)
    SX = R.alloc("sx", 4, 4)
    CS = R.alloc("cs", 4, 4)
    ONES = R.alloc("ones")
    XF = [[R.alloc(f"xf{b}{i}", 4, 4) for i in range(2)] for b in range(2)]
    WF = [[R.alloc(f"wf{b}{i}", 4, 4) for i in range(4)] for b in range(2)]
    ACC = R.alloc("acc", 128, 4)
    EX = R.alloc("ex", 32, 4)
    def acc(ai, t): return ACC + (ai * 4 + t) * 16
    a("s_lshr_b32 s31, s12, 1")
    a("s_and_b32 s32, s12, 1")
    a("s_xor_b32 s33, s31, s32")
    a("v_and_b32 v3, 31, v2")
    a("v_lshrrev_b32 v4, 5, v2")
    a("v_bfe_u32 v5, v2, 1, 3")
    a("s_lshl_b32 s15, s31, 13")
    a("v_lshl_add_u32 v6, v3, 7, s15")
    a("v_xor_b32 v5, v5, v4")
    a("s_lshl_b32 s15, s33, 1")
    a("v_xor_b32 v5, s15, v5")
    for u in range(4):
        a(f"v_xor_b32 v7, {2*u}, v5")
        a(f"v_lshl_add_u32 v{XA+u}, v7, 4, v6")
    a("s_cmp_lt_u32 s14, 8")
    sel(a, 15, 240, 192)
    a("s_mul_i32 s15, s15, s32")
    a("s_add_u32 s15, s15, s30")
    a("v_bfe_u32 v5, v2, 2, 2")
    a("v_and_b32 v6, 3, v2")
    a("v_lshlrev_b32 v6, 3, v6")
    a("v_bfe_u32 v7, v2, 4, 1")
    a("v_lshl_add_u32 v6, v7, 5, v6")
    a("v_add_u32 v6, s15, v6")
    a("v_lshl_add_u32 v7, v4, 3, v5")
    a("v_lshlrev_b32 v7, 9, v7")
    a(f"v_add_u32 v7, {WBUF[0]}, v7")
    a("s_lshl_b32 s15, s33, 13")
    for t in range(4):
        a(f"v_add_u32 v8, {64*t}, v6")
        a("v_lshrrev_b32 v9, 6, v8")
        a("v_xor_b32 v9, v9, v5")
        a("v_and_b32 v8, 63, v8")
        a("v_lshl_add_u32 v8, v9, 6, v8")
        a("v_add_u32 v8, v8, v7")
        a(f"v_add_u32 v{WE+t}, s15, v8")
        a(f"v_subrev_u32 v{WO+t}, s15, v8")
    a(f"v_mov_b32 v{ONES}, 0x3f803f80")
    for i in range(4):
        a(f"v_mov_b32 v{SX+i}, 0")
        a(f"v_mov_b32 v{CS+i}, 0")
    for i in range(128):
        a(f"v_mov_b32 v{ACC+i}, 0")
    a("s_mov_b32 s34, 0")
    a("s_mov_b32 s35, 0")

    def reads(u, b, NT):
        W = WE if u % 2 == 0 else WO
        r = [f"ds_read_b128 {v(XF[b][0],4)}, v{XA+u}"]
        def wr(t):
            return [f"ds_read_b64_tr_b16 {v(WF[b][t],2)}, v{W+t} offset:{u*8192}",
                    f"ds_read_b64_tr_b16 {v(WF[b][t]+2,2)}, v{W+t} offset:{u*8192+2048}"]
        r += wr(0) + wr(1)
        r += [f"ds_read_b128 {v(XF[b][1],4)}, v{XA+u} offset:4096"]
        for t in range(2, NT): r += wr(t)
        return r

    def mainloop(NT, tag):
        a("s_barrier")
        prof_mark(a, 0)
        for ins in reads(0, 0, NT): a(ins)
        a.label(f"K1_loop_{tag}")
        a("s_add_u32 s35, s35, 1")
        a("s_cmp_eq_u32 s35, 3")
        a("s_movk_i32 s36, 0x4000")
        a("s_cmovk_i32 s36, 0x8000")
        a("s_cmov_b32 s35, 0")
        a("s_lshl_b32 s37, s36, 1")
        for u in range(4):
            b = u & 1
            order = [(0,0),(1,0),(0,1),(1,1)] + ([(2,0),(3,0),(2,1),(3,1)] if NT == 4 else [(2,0),(2,1)])
            rd = reads((u + 1) & 3, b ^ 1, NT)
            st = []
            if u % 2 == 0:
                for t in range(NT):
                    for i in range(4):
                        st.append(f"v_dot2c_f32_bf16 v{CS+t}, v{WF[b][t]+i}, v{ONES}")
                st = [st[t*4+i] for i in range(4) for t in range(NT)]
            else:
                for i in range(4):
                    for ai in range(2):
                        st.append(f"v_dot2c_f32_bf16 v{SX+2*ai}, v{XF[b][ai]+i}, v{ONES}")
                        st.append(f"v_dot2c_f32_bf16 v{SX+2*ai+1}, v{XF[b][ai]+i}, v{XF[b][ai]+i}")
            if os.environ.get("K1_NOSTAT"): st = []
            if os.environ.get("K1_NORD"): rd = []
            if os.environ.get("K1_NOTR"): rd = [x for x in rd if "tr_b16" not in x]
            if os.environ.get("K1_NOB128"): rd = [x for x in rd if "b128" not in x]
            upd = []
            if u == 0: upd = [f"v_add_u32 v{XA+0}, s36, v{XA+0}", f"v_add_u32 v{XA+1}, s36, v{XA+1}"]
            if u == 1: upd = [f"v_add_u32 v{XA+2}, s36, v{XA+2}"] + [f"v_add_u32 v{WE+t}, s37, v{WE+t}" for t in range(NT)]
            if u == 2: upd = [f"v_add_u32 v{XA+3}, s36, v{XA+3}"] + [f"v_add_u32 v{WO+t}, s37, v{WO+t}" for t in range(NT)]
            a("s_waitcnt lgkmcnt(0)")
            n = len(order)
            first_rd_gap = 1 if u == 3 else 0
            rdi = 0; sti = 0
            per_st = (len(st) + n - 1) // n
            for mi, (t, ai) in enumerate(order):
                a(f"v_mfma_f32_32x32x16_bf16 {v(acc(ai,t),16)}, {v(WF[b][t],4)}, {v(XF[b][ai],4)}, {v(acc(ai,t),16)}")
                if u == 3 and mi == 0:
                    a("s_barrier")
                if mi >= first_rd_gap:
                    for _ in range(2):
                        if rdi < len(rd):
                            a(rd[rdi]); rdi += 1
                for _ in range(per_st):
                    if sti < len(st):
                        a(st[sti]); sti += 1
                if rdi >= len(rd) and upd and mi >= n - 2:
                    k = len(upd) if mi == n - 1 else (len(upd) + 1) // 2
                    for ins in upd[:k]: a(ins)
                    upd = upd[k:]
            assert rdi == len(rd) and sti == len(st) and not upd, (rdi, len(rd), sti, len(st), upd)
        a("s_add_u32 s34, s34, 1")
        a("s_cmp_lt_u32 s34, 10")
        a(f"s_cbranch_scc1 K1_loop_{tag}")

    RHO = [EX + 0, EX + 2]
    def stats_epilogue(NT):
        prof_mark(a, 1)
        a("s_lshl_b32 s15, s12, 11")
        a(f"s_add_u32 s15, s15, {STAT}")
        a("v_lshl_add_u32 v5, v2, 5, s15")
        a("s_waitcnt lgkmcnt(0)")
        a(f"ds_write_b128 v5, {v(SX,4)}")
        a(f"ds_write_b128 v5, {v(CS,4)} offset:16")
        a("v_xor_b32 v6, 0x400, v5")
        a("v_xor_b32 v7, 0x800, v5")
        a("v_xor_b32 v8, 0xc00, v5")
        a("v_xor_b32 v9, 0x1000, v5")
        a("v_xor_b32 v10, 0x1400, v5")
        a("s_waitcnt lgkmcnt(0)")
        a("s_barrier")
        E = XF[0][0]
        a(f"ds_read_b128 {v(E,4)}, v6")
        a(f"ds_read_b128 {v(E+4,4)}, v7")
        a(f"ds_read_b128 {v(E+8,4)}, v8")
        a(f"ds_read_b128 {v(E+12,4)}, v6 offset:16")
        a(f"ds_read_b128 {v(E+16,4)}, v9 offset:16")
        a(f"ds_read_b128 {v(E+20,4)}, v10 offset:16")
        a("s_waitcnt lgkmcnt(3)")
        for i in range(4):
            a(f"v_add_f32 v{SX+i}, v{SX+i}, v{E+i}")
            a(f"v_add_f32 v{E+4+i}, v{E+4+i}, v{E+8+i}")
        for i in range(4):
            a(f"v_add_f32 v{SX+i}, v{SX+i}, v{E+4+i}")
        BX = E + 24
        a("v_cmp_gt_u32 vcc, 32, v2")
        for ai in range(2):
            sx, sxx = SX + 2*ai, SX + 2*ai + 1
            a(f"v_mul_f32 v{sx}, {fhex(1.0/640)}, v{sx}")
            a(f"v_mul_f32 v{sxx}, {fhex(1.0/640)}, v{sxx}")
            a(f"v_fma_f32 v{sxx}, -v{sx}, v{sx}, v{sxx}")
            a(f"v_max_f32 v{sxx}, 0, v{sxx}")
            a(f"v_cvt_pk_bf16_f32 v{sxx}, v{sxx}, v{sxx}")
            a(f"v_and_b32 v{sxx}, 0xffff0000, v{sxx}")
            a(f"v_add_f32 v{sxx}, {fhex(1e-5)}, v{sxx}")
            a(f"v_cvt_pk_bf16_f32 v{sxx}, v{sxx}, v{sxx}")
            a(f"v_and_b32 v{sxx}, 0xffff0000, v{sxx}")
            a(f"v_sqrt_f32 v{sxx}, v{sxx}")
            a(f"v_cvt_pk_bf16_f32 v{sx}, -v{sx}, -v{sx}")
            a(f"v_cvt_pk_bf16_f32 v{sxx}, v{sxx}, v{sxx}")
            a(f"v_and_b32 v{sxx}, 0xffff0000, v{sxx}")
            a(f"v_rcp_f32 v{RHO[ai]}, v{sxx}")
            a(f"v_cndmask_b32 v{BX+2*ai}, 0, v{sx}, vcc")
            a(f"v_and_b32 v{BX+2*ai+1}, 0xffff, v{BX+2*ai}")
        a("s_waitcnt lgkmcnt(0)")
        AX = E + 28
        for t in range(NT):
            c = CS + t
            a(f"v_add_f32 v{c}, v{c}, v{E+12+t}")
            a(f"v_add_f32 v{E+16+t}, v{E+16+t}, v{E+20+t}")
            a(f"v_add_f32 v{c}, v{c}, v{E+16+t}")
            a(f"v_cvt_pk_bf16_f32 v3, v{c}, v{c}")
            a(f"v_and_b32 v3, 0xffff0000, v3")
            a(f"v_sub_f32 v3, v{c}, v3")
            a(f"v_cvt_pk_bf16_f32 v{AX+2*t}, v{c}, v3")
            a(f"v_and_b32 v4, 0xffff0000, v{AX+2*t}")
            a(f"v_sub_f32 v3, v3, v4")
            a(f"v_cvt_pk_bf16_f32 v{AX+2*t+1}, v3, 0")
        a("s_nop 1")
        for t in range(NT):
            for ai in range(2):
                a(f"v_mfma_f32_32x32x8_bf16 {v(acc(ai,t),16)}, {v(AX+2*t,2)}, {v(BX+2*ai,2)}, {v(acc(ai,t),16)}")

    a("s_cmp_lt_u32 s14, 8")
    a("s_cbranch_scc0 K1_z")
    mainloop(4, "q")
    stats_epilogue(4)
    a("v_lshlrev_b32 v5, 4, v2")
    a("v_xor_b32 v6, 64, v5")
    a("v_xor_b32 v7, 128, v5")
    a("s_mul_i32 s36, s14, 30")
    a("s_mul_i32 s15, s32, 15")
    a("s_add_u32 s36, s36, s15")
    a("s_lshl_b32 s37, s36, 5")
    a("s_lshl_b32 s15, s13, 1")
    a("s_add_u32 s15, s15, s31")
    a("s_add_u32 s37, s37, s15")
    a("s_lshl_b32 s37, s37, 10")
    RS = [EX + 4, EX + 6]
    ST = [EX + 8, EX + 12, EX + 16, EX + 20]
    for Q in range(15):
        t, q = Q // 4, Q % 4
        pp, U = Q // 5, Q % 5
        if U == 0:
            a(f"s_cmp_lt_u32 s36, {80 - 5*pp}")
            a(f"s_cselect_b32 s15, {fhex(QSCALE)}, 1.0")
            a(f"v_mul_f32 v{RS[0]}, s15, v{RHO[0]}")
            a(f"v_mul_f32 v{RS[1]}, s15, v{RHO[1]}")
            if Q == 0:
                a("s_nop 7")
        S = ST[Q % 4]
        for ai in range(2):
            A = acc(ai, t) + 4*q
            a(f"v_pk_mul_f32 {v(A,2)}, {v(A,2)}, {v(RS[ai],2)} op_sel_hi:[1,0]")
            a(f"v_pk_mul_f32 {v(A+2,2)}, {v(A+2,2)}, {v(RS[ai],2)} op_sel_hi:[1,0]")
        for ai in range(2):
            A = acc(ai, t) + 4*q
            a(f"v_cvt_pk_bf16_f32 v{S+2*ai}, v{A}, v{A+1}")
            a(f"v_cvt_pk_bf16_f32 v{S+2*ai+1}, v{A+2}, v{A+3}")
        a("s_nop 1")
        a(f"v_permlane32_swap_b32 v{S}, v{S+2}")
        a(f"v_permlane32_swap_b32 v{S+1}, v{S+3}")
        a(f"buffer_store_dwordx4 {v(S,4)}, v{5+SWZU[U]}, s[24:27], s37 offen")
        a("s_add_u32 s37, s37, 32768")
    prof_mark(a, 2)
    prof_end(a, 0, 24)

    a.label("K1_z")
    mainloop(3, "z")
    stats_epilogue(3)
    a("v_lshrrev_b32 v4, 5, v2")
    a("v_lshlrev_b32 v7, 2, v4")
    a("v_xor_b32 v7, v7, v2")
    a("v_lshlrev_b32 v5, 4, v7")
    a("v_xor_b32 v6, 0x480, v5")
    a("s_cmp_lt_u32 s14, 12")
    sel(a, 37, WS_Z1, WS_Z2R)
    a("s_lshl_b32 s36, s13, 2")
    a("s_lshl_b32 s15, s31, 1")
    a("s_add_u32 s36, s36, s15")
    a("s_mul_i32 s38, s36, 24")
    a("s_and_b32 s15, s14, 3")
    a("s_lshl_b32 s39, s15, 1")
    a("s_add_u32 s39, s39, s32")
    a("s_mul_i32 s15, s39, 3")
    a("s_add_u32 s38, s38, s15")
    a("s_lshl_b32 s38, s38, 11")
    a("s_add_u32 s37, s37, s38")
    c0 = -2.0 * math.sqrt(2.0 / math.pi) * math.log2(math.e)
    c1 = c0 * 0.044715
    K0, K1c, ONE = EX + 4, EX + 6, EX + 8
    a(f"v_mov_b32 v{K0}, {fhex(c0)}")
    a(f"v_mov_b32 v{K1c}, {fhex(c1)}")
    a(f"v_mov_b32 v{ONE}, 1.0")
    for i in range(4): a(f"v_mov_b32 v{SX+i}, 0")
    TM = XF[0][0]
    PK = [EX + 12, EX + 16, EX + 20, EX + 24]
    a("s_nop 4")
    cnt = 0
    for ai in range(2):
        for t in range(3):
            for u in range(2):
                A = acc(ai, t) + 8*u
                Tm = TM + (cnt % 2) * 8
                S = PK[cnt % 4]
                bc = "op_sel_hi:[1,0]"
                for i in range(4):
                    a(f"v_pk_mul_f32 {v(A+2*i,2)}, {v(A+2*i,2)}, {v(RHO[ai],2)} {bc}")
                for i in range(4):
                    a(f"v_pk_mul_f32 {v(Tm+2*i,2)}, {v(A+2*i,2)}, {v(A+2*i,2)}")
                for i in range(4):
                    a(f"v_pk_fma_f32 {v(Tm+2*i,2)}, {v(Tm+2*i,2)}, {v(K1c,2)}, {v(K0,2)} op_sel_hi:[1,0,0]")
                for i in range(4):
                    a(f"v_pk_mul_f32 {v(Tm+2*i,2)}, {v(Tm+2*i,2)}, {v(A+2*i,2)}")
                for i in range(8):
                    a(f"v_exp_f32 v{Tm+i}, v{Tm+i}")
                for i in range(4):
                    a(f"v_pk_add_f32 {v(Tm+2*i,2)}, {v(Tm+2*i,2)}, {v(ONE,2)} {bc}")
                for i in range(8):
                    a(f"v_rcp_f32 v{Tm+i}, v{Tm+i}")
                for i in range(4):
                    a(f"v_pk_mul_f32 {v(A+2*i,2)}, {v(A+2*i,2)}, {v(Tm+2*i,2)}")
                for i in range(4):
                    a(f"v_cvt_pk_bf16_f32 v{S+i}, v{A+2*i}, v{A+2*i+1}")
                a(f"buffer_store_dwordx4 {v(S,4)}, v{5+u}, s[24:27], s37 offen")
                for i in range(4):
                    a(f"v_dot2c_f32_bf16 v{SX+2*ai}, v{S+i}, v{ONES}")
                    a(f"v_dot2c_f32_bf16 v{SX+2*ai+1}, v{S+i}, v{S+i}")
                cnt += 1
            a(f"s_add_u32 s37, s37, {2048 if t < 2 else 24*2048 - 2*2048}")
    a("s_cmp_lt_u32 s14, 12")
    a("s_cbranch_scc1 K1_done")
    a("s_nop 2")
    a(f"v_permlane32_swap_b32 v{SX}, v{SX+2}")
    a(f"v_permlane32_swap_b32 v{SX+1}, v{SX+3}")
    a(f"v_add_f32 v{SX}, v{SX}, v{SX+2}")
    a(f"v_add_f32 v{SX+1}, v{SX+1}, v{SX+3}")
    a("v_and_b32 v3, 31, v2")
    a("v_lshlrev_b32 v3, 3, v3")
    a("v_lshl_add_u32 v3, v4, 11, v3")
    a("s_lshl_b32 s36, s36, 3")
    a("s_add_u32 s36, s36, s39")
    a("s_lshl_b32 s36, s36, 8")
    a(f"s_add_u32 s36, s36, {WS_ST}")
    a(f"buffer_store_dwordx2 {v(SX,2)}, v3, s[24:27], s36 offen")
    a.label("K1_done")
    prof_mark(a, 2)
    prof_end(a, 0, 24)
    a.label("K1_exit")
    a("s_endpgm")
    return R.n
```

```python
from asmlib import *
from layout import *
import os

SLOT = 13312
CPL = 12288
GR0 = 3 * SLOT
GSLOT = 10240
GRING = 3 * GSLOT
K2_LDS = GR0 + 4 * GRING
BIAS = 80.0
THR = 2.0 ** (30)
ACT_T16 = 44 * 1024

def gen_k2(a, kidx=2):
    kernel_begin(a, "k2_kernel")
    a("s_cmp_ge_u32 s2, 256")
    a("s_cbranch_scc1 K2_exit")
    prof_begin(a)
    a("s_load_dwordx2 s[4:5], s[0:1], 16")
    a("s_load_dwordx4 s[44:47], s[0:1], 40")
    a("s_load_dwordx2 s[8:9], s[0:1], 56")
    a("s_load_dwordx2 s[10:11], s[0:1], 80")
    a("v_lshrrev_b32 v1, 6, v0")
    a("v_and_b32 v2, 63, v0")
    a("v_readfirstlane_b32 s12, v1")
    a("s_and_b32 s13, s2, 7")
    a("s_lshl_b32 s13, s13, 2")
    a("s_lshr_b32 s15, s2, 6")
    a("s_add_u32 s13, s13, s15")
    a("s_bfe_u32 s14, s2, 0x30003")
    a("s_and_b32 s32, s13, 1")
    a("s_lshr_b32 s33, s13, 1")
    a("s_mul_i32 s33, s33, 5")
    a("s_mul_i32 s34, s32, 3")
    a("s_add_u32 s34, s34, s33")
    a("s_add_u32 s33, s33, 2")
    a("v_and_b32 v3, 31, v2")
    a("v_lshrrev_b32 v4, 5, v2")
    a("s_waitcnt lgkmcnt(0)")
    srd(a, 24, 10, 11, WS_SIZE)
    a("s_cmp_ge_u32 s12, 4")
    a("s_cbranch_scc1 K2_G")
    gen_A(a, kidx)
    a.label("K2_G")
    gen_G(a, kidx)
    a.label("K2_exit")
    a("s_endpgm")

def gen_A(a, kidx):
    R = Regs(12, 256)
    KA = R.alloc("ka"); KR = R.alloc("kr"); VA = R.alloc("va", 2)
    M = R.alloc("m", 4)
    QM = [R.alloc(f"qm{i}", 4, 4) for i in range(4)]
    QR = [R.alloc(f"qr{i}", 2) for i in range(4)]
    KM = [R.alloc(f"km{i}", 4, 4) for i in range(2)]
    KRm = [R.alloc(f"krm{i}", 2) for i in range(2)]
    VF = [R.alloc(f"vf{i}", 8, 4) for i in range(2)]
    S = [R.alloc(f"s{i}", 16, 4) for i in range(2)]
    P = [R.alloc(f"p{i}", 8, 4) for i in range(2)]
    O = [R.alloc(f"o{i}", 16, 4) for i in range(4)]
    X = R.alloc("x", 32, 4)
    a("s_and_b32 s35, s12, 1")
    a("s_lshr_b32 s36, s12, 1")
    a("s_lshl_b32 s37, s14, 2")
    a("s_lshl_b32 s15, s35, 1")
    a("s_add_u32 s37, s37, s15")
    a("s_add_u32 s38, s37, s36")
    a("s_xor_b32 s39, s38, 1")
    a("v_lshlrev_b32 v5, 2, v4")
    a("v_xor_b32 v5, v5, v3")
    a("v_lshlrev_b32 v5, 4, v5")
    a("v_lshl_add_u32 v6, v4, 15, v5")
    a("v_xor_b32 v7, 8, v3")
    a("v_lshlrev_b32 v7, 4, v7")
    a("s_lshl_b32 s15, s32, 3")
    a("v_add_u32 v7, s15, v7")
    a("s_lshl_b32 s40, s34, 5")
    a("s_add_u32 s41, s40, s39")
    a("s_add_u32 s40, s40, s38")
    a("s_lshl_b32 s40, s40, 10")
    a("s_lshl_b32 s41, s41, 10")
    a("s_lshl_b32 s42, s33, 5")
    a("s_add_u32 s43, s42, s39")
    a("s_add_u32 s42, s42, s38")
    a("s_lshl_b32 s42, s42, 10")
    a("s_lshl_b32 s43, s43, 10")
    for i in range(4):
        a(f"v_mov_b32 v{QR[i]}, 0")
        a(f"v_mov_b32 v{QR[i]+1}, 0")
    for i in range(4):
        a(f"buffer_load_dwordx4 {v(QM[i],4)}, v6, s[24:27], s{40+(i>>1)} offen offset:{512*(i&1)}")
    a("s_mov_b32 exec_hi, 0")
    for i in range(4):
        a(f"buffer_load_dwordx2 {v(QR[i],2)}, v7, s[24:27], s{42+(i>>1)} offen offset:{512*(i&1)}")
    a("s_mov_b32 exec_hi, -1")
    a(f"v_mov_b32 v{X}, 0x3f80")
    a(f"v_mov_b32 v{X+1}, 0")
    a(f"v_mov_b32 v{X+2}, 0x3f80")
    a(f"v_mov_b32 v{X+3}, 0")
    a("s_min_u32 s15, s12, 2")
    a(f"s_mul_i32 s15, s15, {SLOT}")
    a(f"s_add_u32 s15, s15, {CPL}")
    a("v_lshl_add_u32 v8, v2, 4, s15")
    a(f"ds_write_b128 v8, {v(X,4)}")
    a("s_mul_i32 s15, s36, 6144")
    a(f"v_lshl_add_u32 v{KA}, v4, 10, v5")
    a(f"v_add_u32 v{KA}, s15, v{KA}")
    a("s_add_u32 s48, s15, 2048")
    a("v_add_u32 v8, s48, v7")
    a(f"v_lshlrev_b32 v9, 4, v3")
    a(f"v_add_u32 v9, {CPL}, v9")
    a("v_cmp_gt_u32 vcc, 32, v2")
    a("v_bfe_u32 v10, v2, 2, 2")
    a("v_lshl_add_u32 v10, v4, 2, v10")
    a(f"v_cndmask_b32 v{KR}, v9, v8, vcc")
    a("v_bfe_u32 v8, v2, 4, 1")
    a("v_and_b32 v9, 3, v2")
    a("v_lshl_add_u32 v8, v8, 2, v9")
    a("v_lshrrev_b32 v9, 1, v8")
    a("v_cmp_lt_u32 vcc, 4, v8")
    a("v_and_b32 v11, 1, v8")
    a("s_nop 0")
    a("v_cndmask_b32 v9, v9, 3, vcc")
    a("v_cmp_eq_u32 s[50:51], 4, v8")
    a("v_mov_b32 v8, s32")
    a("s_nop 0")
    a("v_cndmask_b32 v11, v11, v8, s[50:51]")
    a("v_lshlrev_b32 v8, 2, v9")
    a("v_xor_b32 v8, v8, v10")
    a("v_lshlrev_b32 v8, 4, v8")
    a("v_lshl_add_u32 v8, v11, 3, v8")
    a("v_lshlrev_b32 v9, 10, v9")
    a("s_add_u32 s48, s15, 3072")
    a("v_add_u32 v9, s48, v9")
    a(f"v_mov_b32 v11, {CPL}")
    a("v_cndmask_b32 v9, v9, v11, vcc")
    a(f"v_add_u32 v{VA}, v8, v9")
    a(f"v_xor_b32 v{VA+1}, 0x80, v{VA}")
    for i in range(8):
        a(f"v_mov_b32 v{P[1]+i}, 0")
        a(f"v_mov_b32 v{VF[1]+i}, 0")
    a("s_waitcnt lgkmcnt(0)")
    a("s_barrier")
    prof_mark(a, 0)
    def rdK(kt):
        return [f"ds_read_b128 {v(KM[kt],4)}, v{KA} offset:{512*kt}", f"ds_read_b64 {v(KRm[kt],2)}, v{KR} offset:{512*kt}"]
    def rdV(kt):
        return [f"ds_read_b64_tr_b16 {v(VF[kt]+4*j+2*e,2)}, v{VA+e} offset:{512*kt+256*j}" for j in range(2) for e in range(2)]
    for ins in rdK(0) + rdK(1) + rdV(0): a(ins)
    a("s_waitcnt vmcnt(0) lgkmcnt(6)")
    for i in range(4):
        a(f"v_mfma_f32_32x32x16_bf16 {v(O[i],16)}, {v(KM[0],4)}, {v(QM[i],4)}, 0")
    for i in range(4):
        a(f"v_mfma_f32_32x32x8_bf16 {v(O[i],16)}, {v(KRm[0],2)}, {v(QR[i],2)}, {v(O[i],16)}")
    a("s_nop 8")
    def set_m(i, src):
        a(f"v_cvt_pk_bf16_f32 v{src}, -v{src}, -v{src}")
        a(f"v_and_b32 v{M+i}, 0xffff0000, v{src}")
        a(f"v_xor_b32 v{M+i}, 0x80000000, v{M+i}")
        a("s_mov_b32 exec_lo, 0")
        a(f"v_and_b32 v{QR[i]}, 0xffff, v{src}")
        a("s_mov_b32 exec_lo, -1")
    for i in range(4):
        a(f"v_max3_f32 v5, v{O[i]}, v{O[i]+1}, v{O[i]+2}")
        for j in range(3, 15, 2):
            a(f"v_max3_f32 v5, v5, v{O[i]+j}, v{O[i]+j+1}")
        a(f"v_max_f32 v5, v5, v{O[i]+15}")
        a("v_mov_b32 v6, v5")
        a("s_nop 1")
        a("v_permlane32_swap_b32 v5, v6")
        a("v_max_f32 v5, v5, v6")
        a(f"v_add_f32 v5, {fhex(BIAS)}, v5")
        a("v_rndne_f32 v5, v5")
        set_m(i, 5)
    for i in range(4):
        for j in range(16): a(f"v_mov_b32 v{O[i]+j}, 0")
    a(f"v_mfma_f32_32x32x16_bf16 {v(S[0],16)}, {v(KM[0],4)}, {v(QM[0],4)}, 0")
    a(f"v_mfma_f32_32x32x8_bf16 {v(S[0],16)}, {v(KRm[0],2)}, {v(QR[0],2)}, {v(S[0],16)}")
    a("s_mov_b32 s48, 0")
    a("s_mov_b32 s49, 0")
    a(f"s_mov_b32 s52, {fhex(THR)}")
    a("s_nop 7")
    a("s_waitcnt lgkmcnt(0)")
    prof_mark(a, 1)
    rescale = []
    a.label("K2A_loop")
    for n in range(8):
        qi, kt = n & 3, n >> 2
        qn, ktn = (n + 1) & 3, ((n + 1) >> 2) & 1
        qp, ktp = (n - 1) & 3, ((n - 1) >> 2) & 1
        Sc, Sn, Pc, Pp = S[n & 1], S[(n + 1) & 1], P[n & 1], P[(n + 1) & 1]
        mf = [f"v_mfma_f32_32x32x16_bf16 {v(O[qp],16)}, {v(VF[ktp],4)}, {v(Pp,4)}, {v(O[qp],16)}",
              f"v_mfma_f32_32x32x16_bf16 {v(Sn,16)}, {v(KM[ktn],4)}, {v(QM[qn],4)}, 0",
              f"v_mfma_f32_32x32x8_bf16 {v(Sn,16)}, {v(KRm[ktn],2)}, {v(QR[qn],2)}, {v(Sn,16)}",
              f"v_mfma_f32_32x32x16_bf16 {v(O[qp],16)}, {v(VF[ktp]+4,4)}, {v(Pp+4,4)}, {v(O[qp],16)}"]
        e = [f"v_exp_f32 v{Sc+i}, v{Sc+i}" for i in range(16)]
        c = [f"v_cvt_pk_bf16_f32 v{Pc+i}, v{Sc+2*i}, v{Sc+2*i+1}" for i in range(8)]
        rd = {4: rdK(0), 5: rdV(0)[:2], 6: rdV(0)[2:], 7: rdK(1), 1: rdV(1)[:2], 2: rdV(1)[2:]}.get(n, [])
        post = {g: [] for g in range(4)}
        if n in (3, 7): post[0].append("s_waitcnt lgkmcnt(0)")
        if n == 3:
            post[1] += ["s_add_u32 s49, s49, 1"]
            post[2] += ["s_cmp_eq_u32 s49, 3"]
            post[3] += [f"s_movk_i32 s53, {SLOT}", f"s_cmovk_i32 s53, {(-2*SLOT) & 0xffff}", "s_cmov_b32 s49, 0"]
        if n == 4:
            post[0].append("s_barrier")
            post[1].append(rd[0]); post[2].append(rd[1])
        elif n == 7:
            post[1].append(rd[0]); post[2].append(rd[1])
            post[3] += ["s_add_u32 s48, s48, 1", "s_cmp_lt_u32 s48, 16"]
        elif rd:
            post[0].append(rd[0]); post[1].append(rd[1])
        for g in range(4):
            a(mf[g])
            for ins in post[g]: a(ins)
            for ins in e[4*g:4*g+4]: a(ins)
            if g == 0 and n in (0, 2):
                qa, qb_ = (n + 1) & 3, (n + 2) & 3
                a(f"v_max_f32 v5, v{O[qa]+8}, v{O[qb_]+8}")
                a("v_cmp_lt_f32 vcc, s52, v5")
                a("s_cmp_lg_u32 vcc_hi, 0")
                a(f"s_cbranch_scc1 K2A_rs{n}")
                a.label(f"K2A_rs{n}_ret")
                rescale.append((n, qa, qb_))
            if g == 0 and n == 4:
                for r_ in (KA, KR, VA, VA + 1): a(f"v_add_u32 v{r_}, s53, v{r_}")
            if g > 0:
                for ins in c[2*(g-1):2*(g-1)+2]: a(ins)
        for ins in c[6:8]: a(ins)
    a("s_cbranch_scc1 K2A_loop")
    a("s_nop 1")
    a(f"v_mfma_f32_32x32x16_bf16 {v(O[3],16)}, {v(VF[1],4)}, {v(P[1],4)}, {v(O[3],16)}")
    a(f"v_mfma_f32_32x32x16_bf16 {v(O[3],16)}, {v(VF[1]+4,4)}, {v(P[1]+4,4)}, {v(O[3],16)}")
    prof_mark(a, 2)
    SCR = 7168
    a(f"s_mul_i32 s15, s12, {SCR}")
    a("v_lshl_add_u32 v5, v2, 4, s15")
    a("v_lshl_add_u32 v6, v2, 2, s15")
    a("s_xor_b32 s15, s12, 2")
    a(f"s_mul_i32 s15, s15, {SCR}")
    a("v_lshl_add_u32 v7, v2, 4, s15")
    a("v_lshl_add_u32 v8, v2, 2, s15")
    a("s_waitcnt lgkmcnt(0)")
    for qd in range(3):
        a(f"ds_write_b128 v5, {v(O[2]+4*qd,4)} offset:{1024*qd}")
    a(f"ds_write_b32 v6, v{M+2} offset:6144")
    a(f"ds_write_b32 v6, v{M+3} offset:6400")
    for qd in range(3):
        a(f"ds_write_b128 v5, {v(O[3]+4*qd,4)} offset:{3072+1024*qd}")
    a("v_lshrrev_b32 v9, 4, v3")
    a(f"s_mov_b32 s15, {ACT_T16}")
    a("v_mul_lo_u32 v9, v9, s15")
    a("v_and_b32 v10, 15, v3")
    a("v_lshl_add_u32 v10, v10, 4, v9")
    a("v_lshl_add_u32 v9, v4, 8, v10")
    a("s_lshl_b32 s40, s38, 2")
    a("s_mul_i32 s40, s40, 44")
    a("s_lshr_b32 s15, s13, 1")
    a("s_add_u32 s41, s40, s15")
    a("s_lshl_b32 s41, s41, 10")
    a("s_lshl_b32 s15, s32, 9")
    a("s_add_u32 s41, s41, s15")
    a(f"s_add_u32 s41, s41, {WS_ACT}")
    a("s_lshr_b32 s15, s13, 3")
    a("s_add_u32 s42, s40, s15")
    a("s_lshl_b32 s42, s42, 10")
    a("s_bfe_u32 s15, s13, 0x20001")
    a("s_lshl_b32 s15, s15, 8")
    a("s_add_u32 s42, s42, s15")
    a("s_lshl_b32 s15, s32, 3")
    a("s_add_u32 s42, s42, s15")
    a(f"s_add_u32 s42, s42, {WS_ACT + 16*1024}")
    a("s_waitcnt lgkmcnt(0)")
    a("s_barrier")
    for i in range(2):
        a(f"ds_read_b32 v{X+24+i}, v8 offset:{6144+256*i}")
        for qd in range(3):
            a(f"ds_read_b128 {v(X+12*i+4*qd,4)}, v7 offset:{3072*i+1024*qd}")
    for i in range(2):
        a(f"s_waitcnt lgkmcnt({4*(1-i)})")
        mb = X + 24 + i
        a(f"v_max_f32 v5, v{M+i}, v{mb}")
        a(f"v_sub_f32 v6, v{M+i}, v5")
        a(f"v_sub_f32 v7, v{mb}, v5")
        a("v_cvt_i32_f32 v6, v6")
        a("v_cvt_i32_f32 v7, v7")
        for j in range(12):
            a(f"v_ldexp_f32 v{O[i]+j}, v{O[i]+j}, v6")
            a(f"v_ldexp_f32 v{X+12*i+j}, v{X+12*i+j}, v7")
        for j in range(12):
            a(f"v_add_f32 v{O[i]+j}, v{O[i]+j}, v{X+12*i+j}")
        a(f"v_mov_b32 v5, v{O[i]+8}")
        a(f"v_mov_b32 v6, v{O[i]+8}")
        a("s_nop 1")
        a("v_permlane32_swap_b32 v5, v6")
        a("v_rcp_f32 v6, v6")
        a("s_nop 0")
        for j in range(12):
            a(f"v_mul_f32 v{O[i]+j}, v{O[i]+j}, v6")
        for j in range(6):
            a(f"v_cvt_pk_bf16_f32 v{S[i]+j}, v{O[i]+2*j}, v{O[i]+2*j+1}")
        a(f"buffer_store_dwordx4 {v(S[i],4)}, v9, s[24:27], s41 offen")
        a("s_mov_b32 exec_hi, 0")
        a(f"buffer_store_dwordx2 {v(S[i]+4,2)}, v10, s[24:27], s42 offen")
        a("s_mov_b32 exec_hi, -1")
        if i == 0:
            a(f"s_add_u32 s41, s41, {2*ACT_T16}")
            a(f"s_add_u32 s42, s42, {2*ACT_T16}")
    prof_mark(a, 3)
    prof_end(a, kidx, 24)
    for (n, qa, qb_) in rescale:
        a.label(f"K2A_rs{n}")
        for q in (qa, qb_):
            a(f"v_mov_b32 v5, v{O[q]+8}")
            a(f"v_mov_b32 v6, v{O[q]+8}")
            a("s_nop 1")
            a("v_permlane32_swap_b32 v5, v6")
            a("v_frexp_exp_i32_f32 v7, v6")
            a("v_cvt_f32_i32 v7, v7")
            a(f"v_add_f32 v7, {fhex(BIAS)}, v7")
            a("v_cmp_lt_f32 vcc, s52, v6")
            a(f"v_mov_b32 v8, v{M+q}")
            a("s_nop 0")
            a("v_cndmask_b32 v7, 0, v7, vcc")
            a(f"v_add_f32 v7, v7, v8")
            set_m(q, 7)
            a(f"v_sub_f32 v8, v8, v{M+q}")
            a("v_cvt_i32_f32 v8, v8")
            for j in range(16):
                a(f"v_ldexp_f32 v{O[q]+j}, v{O[q]+j}, v8")
        a("s_nop 1")
        a(f"s_branch K2A_rs{n}_ret")

def gen_G(a, kidx):
    R = Regs(12, 256)
    VL = R.alloc("vl")
    VW = R.alloc("vw", 4)
    BA = R.alloc("ba", 2)
    AA = R.alloc("aa", 2)
    Z1 = R.alloc("z1", 12, 4)
    BS = R.alloc("bs", 3)
    BF = [[R.alloc(f"bf{ks}{t}", 4, 4) for t in range(2)] for ks in range(2)]
    AF = [[R.alloc(f"af{ks}{t}", 4, 4) for t in range(3)] for ks in range(2)]
    ACC = R.alloc("acc", 96, 4)
    def acc(ai, ft): return ACC + (ai * 3 + ft) * 16
    a("s_sub_u32 s12, s12, 4")
    srd(a, 16, 44, 45, 2048 * 2048 * 2)
    srd(a, 20, 46, 47, 4096)
    a(f"v_lshlrev_b32 v{VL}, 4, v2")
    a("s_and_b32 s15, s12, 1")
    a("s_add_u32 s35, s15, 1")
    a("s_mul_i32 s35, s35, 80")
    a("s_lshr_b32 s36, s12, 1")
    a("s_lshl_b32 s37, s36, 4")
    a("s_add_u32 s38, s34, s35")
    a("s_lshl_b32 s38, s38, 5")
    a("s_add_u32 s38, s38, s37")
    a("s_lshl_b32 s38, s38, 10")
    a(f"s_add_u32 s39, s38, {32768-1024}")
    a("s_add_u32 s40, s33, s35")
    a("s_lshl_b32 s40, s40, 5")
    a("s_add_u32 s40, s40, s37")
    a("s_lshl_b32 s40, s40, 10")
    a("s_sub_u32 s40, s40, 2048")
    a("s_mul_i32 s41, s12, 3072")
    a("s_mov_b32 s42, 0")
    def issue_kv():
        a("s_mov_b32 m0, s41")
        a("s_add_u32 s42, s42, 1")
        a(f"buffer_load_dwordx4 v{VL}, s[24:27], s38 offen lds")
        a(f"buffer_load_dwordx4 v{VL}, s[24:27], s39 offen offset:1024 lds")
        a(f"buffer_load_dwordx4 v{VL}, s[24:27], s40 offen offset:2048 lds")
        a("s_add_u32 s38, s38, 1024")
        a("s_add_u32 s39, s39, 1024")
        a("s_add_u32 s40, s40, 1024")
        a("s_cmp_eq_u32 s42, 3")
        a(f"s_movk_i32 s15, {SLOT}")
        a(f"s_cmovk_i32 s15, {(-2*SLOT) & 0xffff}")
        a("s_cmov_b32 s42, 0")
        a("s_add_u32 s41, s41, s15")
    for _ in range(3): issue_kv()
    a("s_and_b32 s48, s2, 3")
    a("s_lshl_b32 s48, s48, 3")
    a("s_add_u32 s48, s48, s14")
    a("s_bfe_u32 s49, s2, 0x10002")
    a("s_lshl_b32 s49, s49, 2")
    a("s_lshr_b32 s15, s2, 6")
    a("s_add_u32 s49, s49, s15")
    a("s_mul_i32 s50, s12, 384")
    a("s_mul_i32 s15, s49, 3")
    a("s_add_u32 s50, s50, s15")
    a("s_lshl_b32 s50, s50, 11")
    a(f"s_add_u32 s50, s50, {WS_Z2N}")
    a("s_lshl_b32 s51, s48, 18")
    a("s_lshl_b32 s15, s12, 10")
    a("s_add_u32 s51, s51, s15")
    a("v_lshrrev_b32 v5, 2, v2")
    a("v_lshlrev_b32 v5, 12, v5")
    a("v_lshrrev_b32 v6, 4, v2")
    a("v_xor_b32 v6, v6, v2")
    a("v_and_b32 v6, 3, v6")
    a(f"v_lshl_add_u32 v{VW}, v6, 4, v5")
    for i in range(1, 4):
        a(f"v_add_u32 v{VW+i}, {65536-1024}, v{VW+i-1}")
    a(f"s_mul_i32 s52, s12, {GRING}")
    a(f"s_add_u32 s52, s52, {GR0}")
    a("s_mov_b32 s53, s52")
    a("s_mov_b32 s54, 0")
    def issue_g():
        a("s_mov_b32 m0, s53")
        a("s_add_u32 s15, s50, 4096")
        for i in range(4):
            a(f"buffer_load_dwordx4 v{VL}, s[24:27], s50 offen offset:{1024*i} lds")
        a("s_add_u32 m0, s53, 4096")
        a(f"s_add_u32 s50, s50, {24*2048}")
        for i in range(2):
            a(f"buffer_load_dwordx4 v{VL}, s[24:27], s15 offen offset:{1024*i} lds")
        a("s_add_u32 m0, s53, 6144")
        a("s_add_u32 s54, s54, 1")
        for i in range(4):
            a(f"buffer_load_dwordx4 v{VW+i}, s[16:19], s51 offen offset:{1024*i} lds")
        a("s_add_u32 s51, s51, 64")
        a("s_cmp_eq_u32 s54, 3")
        a(f"s_movk_i32 s15, {GSLOT}")
        a(f"s_cmovk_i32 s15, {(-2*GSLOT) & 0xffff}")
        a("s_cmov_b32 s54, 0")
        a("s_add_u32 s53, s53, s15")
    issue_g(); issue_g()
    a("s_lshl_b32 s55, s2, 2")
    a("s_add_u32 s55, s55, s12")
    a("s_min_u32 s55, s55, 879")
    a("s_mul_hi_u32 s56, s55, 0xCCCCCCD")
    a("s_mul_i32 s15, s56, 20")
    a("s_sub_u32 s57, s55, s15")
    a("s_mul_i32 s58, s56, 40")
    a("s_mov_b32 s59, 24"); a("s_mov_b32 s60, 4"); a("s_mov_b32 s61, 8")
    a("s_mul_i32 s15, s56, 160")
    a("s_sub_u32 s15, s15, %d" % (160*16 - 16))
    a("s_cmp_ge_u32 s56, 16")
    a("s_cmov_b32 s58, s15"); a("s_cmovk_i32 s59, 80"); a("s_cmov_b32 s60, 40"); a("s_cmov_b32 s61, 4")
    a("s_lshl_b32 s15, s56, 5")
    a("s_sub_u32 s15, s15, 640")
    a("s_cmp_ge_u32 s56, 20")
    a("s_cmov_b32 s58, s15"); a("s_cmov_b32 s59, 16"); a("s_cmov_b32 s60, 4"); a("s_cmov_b32 s61, 8")
    a("s_cselect_b32 s28, s8, s4")
    a("s_cselect_b32 s29, s9, s5")
    sel(a, 30, 768*1280, 640*1280)
    a("s_and_b32 s29, s29, 0xffff")
    a("s_mov_b32 s31, 0x00020000")
    a("v_bfe_u32 v5, v2, 2, 2")
    a("v_bfe_u32 v6, v2, 4, 1")
    a("v_mul_lo_u32 v6, v6, s61")
    a("v_add_u32 v5, v5, v6")
    a("v_mul_lo_u32 v6, v4, s60")
    a("v_add3_u32 v5, v5, v6, s58")
    a("s_movk_i32 s15, 1280")
    a("v_mul_lo_u32 v5, v5, s15")
    a("v_and_b32 v6, 3, v2")
    a("v_lshl_add_u32 v5, v6, 4, v5")
    a("s_lshl_b32 s62, s57, 6")
    a("s_mul_i32 s15, s59, 1280")
    a("s_add_u32 s63, s62, s15")
    a("s_sub_u32 s63, s63, 1024")
    a(f"s_add_u32 m0, s52, {2*GSLOT}")
    a("s_nop 0")
    a("buffer_load_dwordx4 v5, s[28:31], s62 offen lds")
    a("buffer_load_dwordx4 v5, s[28:31], s63 offen offset:1024 lds")
    a("v_lshlrev_b32 v7, 2, v4")
    a("v_xor_b32 v7, v7, v2")
    a("v_lshlrev_b32 v7, 4, v7")
    a("v_lshlrev_b32 v8, 1, v3")
    for i in range(3):
        sa, sft, su = 64 + 3*i, 65 + 3*i, 66 + 3*i
        a(f"s_mul_i32 s15, s12, 3")
        a(f"s_add_u32 s15, s15, {i}")
        a(f"s_cmp_ge_u32 s15, 6")
        a(f"s_cselect_b32 s{sa}, 1, 0")
        a(f"s_cselect_b32 s{sft}, 6, 0")
        a(f"s_sub_u32 s{sft}, s15, s{sft}")
        a(f"s_lshr_b32 s{sft}, s{sft}, 1")
        a(f"s_and_b32 s{su}, s15, 1")
        a(f"s_mul_i32 s73, s49, 3")
        a(f"s_add_u32 s{sft}, s{sft}, s73")
        a(f"s_lshl_b32 s73, s48, 1")
        a(f"s_add_u32 s{sa}, s{sa}, s73")
        a(f"s_mul_i32 s73, s{sa}, 24")
        a(f"s_add_u32 s73, s73, s{sft}")
        a(f"s_lshl_b32 s73, s73, 11")
        a(f"s_add_u32 s73, s73, {WS_Z1}")
        a(f"s_mul_i32 s15, s{su}, 0x480")
        a(f"v_xor_b32 v9, s15, v7")
        a(f"buffer_load_dwordx4 {v(Z1+4*i,4)}, v9, s[24:27], s73 offen")
        a(f"s_lshl_b32 s73, s{sa}, 6")
        a(f"buffer_load_ushort v{BS+i}, v8, s[20:23], s73 offen")
    a("v_bfe_u32 v5, v2, 2, 2")
    a("v_xor_b32 v6, v5, v4")
    a("v_lshlrev_b32 v6, 4, v6")
    a("v_lshl_add_u32 v6, v3, 6, v6")
    a(f"s_add_u32 s15, s52, 6144")
    a(f"v_add_u32 v{BA}, s15, v6")
    a(f"v_xor_b32 v{BA+1}, 32, v{BA}")
    a("v_bfe_u32 v6, v2, 4, 1")
    a("v_and_b32 v9, 1, v2")
    a("v_lshl_add_u32 v6, v6, 1, v9")
    a("v_lshl_add_u32 v9, v4, 3, v5")
    a("v_lshlrev_b32 v10, 2, v6")
    a("v_xor_b32 v9, v9, v10")
    a("v_lshlrev_b32 v9, 4, v9")
    a("v_lshl_add_u32 v9, v6, 9, v9")
    a("v_bfe_u32 v10, v2, 1, 1")
    a("v_lshl_add_u32 v9, v10, 3, v9")
    a(f"v_add_u32 v{AA}, s52, v9")
    a(f"v_xor_b32 v{AA+1}, 64, v{AA}")
    for i in range(96): a(f"v_mov_b32 v{ACC+i}, 0")
    a("s_waitcnt vmcnt(34)")
    a("s_barrier")
    a("s_waitcnt vmcnt(6)")
    a("v_lshrrev_b32 v6, 4, v2")
    a("v_lshl_add_u32 v6, v6, 3, v5")
    a("v_lshlrev_b32 v6, 6, v6")
    a("v_and_b32 v9, 3, v2")
    a("v_lshl_add_u32 v6, v9, 3, v6")
    a(f"s_add_u32 s15, s52, {2*GSLOT}")
    a("v_add_u32 v6, s15, v6")
    for nn in range(2):
        for e in range(2):
            a(f"ds_read_b64_tr_b16 {v(BF[0][nn]+2*e,2)}, v6 offset:{256*e+32*nn}")
    a("s_lshl_b32 s15, s57, 1")
    a("s_mul_i32 s15, s15, 44")
    a("s_add_u32 s15, s15, s56")
    a("s_lshl_b32 s15, s15, 10")
    a(f"s_add_u32 s62, s15, {WS_WF}")
    a(f"s_add_u32 s63, s62, {44*1024}")
    a("s_waitcnt lgkmcnt(0)")
    a(f"buffer_store_dwordx4 {v(BF[0][0],4)}, v{VL}, s[24:27], s62 offen")
    a(f"buffer_store_dwordx4 {v(BF[0][1],4)}, v{VL}, s[24:27], s63 offen")
    a("s_mov_b32 s74, 0")
    a("s_mov_b32 s76, 0")
    a.label("K2G_stage")
    a("s_barrier")
    issue_kv()
    a("s_cmp_ge_u32 s74, 4")
    a("s_cselect_b32 s75, 2, 1")
    a.label("K2G_step")
    issue_g()
    a("s_waitcnt vmcnt(20)")
    for ks in range(2):
        a(f"ds_read_b128 {v(BF[ks][0],4)}, v{BA+ks}")
        for ft in range(3):
            for j in range(2):
                a(f"ds_read_b64_tr_b16 {v(AF[ks][ft]+2*j,2)}, v{AA+j} offset:{2048*ft+256*ks}")
            if ft == 0:
                a(f"ds_read_b128 {v(BF[ks][1],4)}, v{BA+ks} offset:2048")
    a("s_add_u32 s76, s76, 1")
    a("s_cmp_eq_u32 s76, 3")
    a(f"s_movk_i32 s15, {GSLOT}")
    a(f"s_cmovk_i32 s15, {(-2*GSLOT) & 0xffff}")
    a("s_cmov_b32 s76, 0")
    for r_ in (BA, BA+1, AA, AA+1): a(f"v_add_u32 v{r_}, s15, v{r_}")
    for ks in range(2):
        a(f"s_waitcnt lgkmcnt({8*(1-ks)})")
        for ft in range(3):
            for ai in range(2):
                a(f"v_mfma_f32_32x32x16_bf16 {v(acc(ai,ft),16)}, {v(AF[ks][ft],4)}, {v(BF[ks][ai],4)}, {v(acc(ai,ft),16)}")
    a("s_sub_u32 s75, s75, 1")
    a("s_cmp_lg_u32 s75, 0")
    a("s_cbranch_scc1 K2G_step")
    a("s_add_u32 s74, s74, 1")
    a("s_cmp_lt_u32 s74, 10")
    a("s_cbranch_scc1 K2G_stage")
    prof_mark(a, 0)
    a("s_barrier")
    issue_kv()
    a("s_waitcnt vmcnt(3)")
    a(f"v_add_u32 v5, s52, v{VL}")
    for n in range(12):
        for qd in range(2):
            a(f"ds_write_b128 v5, {v(ACC+8*n+4*qd,4)} offset:{2048*n+1024*qd}")
    a("s_waitcnt lgkmcnt(0)")
    a("s_barrier")
    issue_kv()
    a("s_mul_i32 s15, s12, 6144")
    a(f"s_add_u32 s15, s15, {GR0}")
    a(f"v_add_u32 v5, s15, v{VL}")
    a(f"v_add_u32 v6, {2*GRING}, v5")
    a("v_lshrrev_b32 v9, 4, v3")
    a(f"s_mov_b32 s15, {ACT_T16}")
    a("v_mul_lo_u32 v9, v9, s15")
    a("v_and_b32 v10, 15, v3")
    a("v_lshl_add_u32 v10, v10, 4, v9")
    a("v_lshl_add_u32 v9, v4, 8, v10")
    for i in range(3):
        B = ACC + 32 * i
        for w in range(4):
            for qd in range(2):
                a(f"ds_read_b128 {v(B+8*w+4*qd,4)}, v{5+(w>>1)} offset:{(w&1)*GRING + 2048*i + 1024*qd}")
        sa, sft, su = 64 + 3*i, 65 + 3*i, 66 + 3*i
        a(f"s_mul_i32 s15, s{sa}, 88")
        a(f"s_add_u32 s15, s15, s{sft}")
        a(f"s_lshl_b32 s15, s15, 10")
        a(f"s_lshl_b32 s73, s{su}, 9")
        a(f"s_add_u32 s15, s15, s73")
        a(f"s_add_u32 s73, s15, {WS_ACT + 20*1024}")
        a(f"v_lshlrev_b32 v{BS+i}, 16, v{BS+i}")
        a("s_waitcnt lgkmcnt(0)")
        for j in range(8):
            a(f"v_add_f32 v{B+j}, v{B+j}, v{B+8+j}")
            a(f"v_add_f32 v{B+16+j}, v{B+16+j}, v{B+24+j}")
        for j in range(8):
            a(f"v_add_f32 v{B+j}, v{B+j}, v{BS+i}")
        for j in range(4):
            a(f"v_lshlrev_b32 v{B+8+2*j}, 16, v{Z1+4*i+j}")
            a(f"v_and_b32 v{B+8+2*j+1}, 0xffff0000, v{Z1+4*i+j}")
        for j in range(8):
            a(f"v_add_f32 v{B+j}, v{B+j}, v{B+16+j}")
        for j in range(8):
            a(f"v_mul_f32 v{B+j}, v{B+j}, v{B+8+j}")
        for j in range(4):
            a(f"v_cvt_pk_bf16_f32 v{B+16+j}, v{B+2*j}, v{B+2*j+1}")
        a(f"buffer_store_dwordx4 {v(B+16,4)}, v9, s[24:27], s73 offen")
    prof_mark(a, 1)
    a("s_waitcnt vmcnt(6)")
    a("s_barrier")
    issue_kv()
    a("s_waitcnt vmcnt(3)")
    a("s_barrier")
    a("s_waitcnt vmcnt(0)")
    a("s_barrier")
    prof_end(a, kidx, 24)
```

```python
from asmlib import *
from layout import *
PITCH = 336
K3_LDS = 4 * 64 * PITCH
DEPTH = 6
def gen_k3(a, kidx=3):
    kernel_begin(a, "k3_kernel")
    a("s_cmp_ge_u32 s2, 256")
    a("s_cbranch_scc1 K3_exit")
    prof_begin(a)
    a("s_load_dwordx2 s[4:5], s[0:1], 0")
    a("s_load_dwordx2 s[6:7], s[0:1], 64")
    a("s_load_dwordx2 s[10:11], s[0:1], 80")
    a("v_lshrrev_b32 v1, 6, v0")
    a("v_and_b32 v2, 63, v0")
    a("v_readfirstlane_b32 s12, v1")
    a("s_and_b32 s13, s2, 7")
    a("s_lshl_b32 s13, s13, 2")
    a("s_bfe_u32 s15, s2, 0x20003")
    a("s_add_u32 s13, s13, s15")
    a("s_lshr_b32 s14, s2, 5")
    a("v_lshlrev_b32 v3, 4, v2")
    a("s_mul_i32 s15, s12, 11")
    a("s_mul_i32 s16, s13, 176")
    a("s_add_u32 s16, s16, s15")
    a("s_lshl_b32 s16, s16, 10")
    a(f"s_add_u32 s30, s16, {WS_ACT}")
    for i in range(1, 4): a(f"s_add_u32 s{30+i}, s{29+i}, {44*1024}")
    a("s_mul_i32 s16, s14, 220")
    a("s_add_u32 s16, s16, s15")
    a("s_lshl_b32 s16, s16, 10")
    a(f"s_add_u32 s34, s16, {WS_WF}")
    for i in range(1, 5): a(f"s_add_u32 s{34+i}, s{33+i}, {44*1024}")
    a("s_waitcnt lgkmcnt(0)")
    srd(a, 24, 10, 11, WS_SIZE)
    srd(a, 16, 4, 5, 2048*640*2)
    srd(a, 20, 6, 7, 2048*640*2)
    FB = 32
    def fr(ks, i): return FB + (ks % DEPTH) * 36 + 4 * i
    VO = [3, 4, 5]
    a("v_add_u32 v4, 4096, v3")
    a("v_add_u32 v5, 8192, v3")
    def loads(ks):
        order = [0, 4, 5, 1, 6, 7, 2, 8, 3]
        for i in order:
            a(f"buffer_load_dwordx4 {v(fr(ks,i),4)}, v{VO[ks//4]}, s[24:27], s{30+i} offen offset:{(ks%4)*1024}")
    for ks in range(DEPTH): loads(ks)
    XR = 8
    a("s_lshl_b32 s40, s13, 6")
    a("s_mul_i32 s40, s40, 1280")
    a("s_mul_i32 s15, s14, 160")
    a("s_add_u32 s40, s40, s15")
    a("s_mov_b32 s41, 0x1999999A")
    a("s_movk_i32 s42, 1280")
    a(f"s_movk_i32 s43, {PITCH}")
    for r in range(3):
        a(f"v_add_u32 v6, {256*r}, v0")
        a("v_mul_hi_u32 v7, v6, s41")
        a("v_mul_u32_u24 v26, 10, v7")
        a("v_sub_u32 v6, v6, v26")
        a("v_mul_lo_u32 v26, v7, s42")
        a(f"v_lshl_add_u32 v{20+r}, v6, 4, v26")
        a("v_mul_lo_u32 v26, v7, s43")
        a(f"v_lshl_add_u32 v{23+r}, v6, 5, v26")
    a("v_cmp_gt_u32 vcc, 64, v7")
    a("v_mov_b32 v26, 0x7fffffff")
    a("s_nop 0")
    a("v_cndmask_b32 v22, v26, v22, vcc")
    a("v_cndmask_b32 v25, 0, v25, vcc")
    for r in range(3):
        a(f"buffer_load_dwordx4 {v(XR+4*r,4)}, v{20+r}, s[16:19], s40 offen")
    nout = 9 * DEPTH + 3
    for ks in range(11):
        later = min(DEPTH - 1, 10 - ks) * 9 + (3 if ks < DEPTH else 0)
        a(f"s_waitcnt vmcnt({min(later, 63)})")
        for nt in range(5):
            for tt in range(4):
                c = (nt * 4 + tt) * 4
                src = f"a[{c}:{c+3}]" if ks > 0 else "0"
                a(f"v_mfma_f32_16x16x32_bf16 a[{c}:{c+3}], {v(fr(ks,4+nt),4)}, {v(fr(ks,tt),4)}, {src}")
        if ks + DEPTH < 11: loads(ks + DEPTH)
    prof_mark(a, 0)
    a("v_and_b32 v6, 15, v2")
    a("v_mul_lo_u32 v6, v6, s43")
    a("v_lshrrev_b32 v7, 4, v2")
    a("v_lshl_add_u32 v6, v7, 4, v6")
    a(f"s_mul_i32 s15, s12, {64*PITCH}")
    a("v_add_u32 v6, s15, v6")
    a("s_nop 4")
    for nt in range(5):
        for tt in range(4):
            c = (nt * 4 + tt) * 4
            a(f"ds_write_b128 v6, a[{c}:{c+3}] offset:{16*tt*PITCH + 64*nt}")
    a("s_waitcnt lgkmcnt(0)")
    a("s_barrier")
    B = FB
    for r in range(3):
        for w in range(4):
            for hh in range(2):
                a(f"ds_read_b128 {v(B + r*32 + w*8 + hh*4, 4)}, v{23+r} offset:{w*64*PITCH + 16*hh}")
    for r in range(3):
        a(f"s_waitcnt lgkmcnt({min(15, 8*(2-r))})")
        Br = B + r*32
        for i in range(8):
            a(f"v_add_f32 v{Br+i}, v{Br+i}, v{Br+8+i}")
            a(f"v_add_f32 v{Br+16+i}, v{Br+16+i}, v{Br+24+i}")
        for i in range(4):
            a(f"v_lshlrev_b32 v26, 16, v{XR+4*r+i}")
            a(f"v_and_b32 v27, 0xffff0000, v{XR+4*r+i}")
            a(f"v_add_f32 v{Br+2*i}, v{Br+2*i}, v26")
            a(f"v_add_f32 v{Br+2*i+1}, v{Br+2*i+1}, v27")
        for i in range(8):
            a(f"v_add_f32 v{Br+i}, v{Br+i}, v{Br+16+i}")
        for i in range(4):
            a(f"v_cvt_pk_bf16_f32 v{Br+8+i}, v{Br+2*i}, v{Br+2*i+1}")
        a(f"buffer_store_dwordx4 {v(Br+8,4)}, v{20+r}, s[20:23], s40 offen")
    prof_end(a, kidx, 24)
    a.label("K3_exit")
    a("s_endpgm")
    return 256 + 80, 256
```

```python
from asmlib import *
from layout import *

def ln_scalars(a, sx, sxx, n, negmu_out, rho_out):
    a(f"v_mul_f32 v{sx}, {fhex(1.0/n)}, v{sx}")
    a(f"v_mul_f32 v{sxx}, {fhex(1.0/n)}, v{sxx}")
    a(f"v_fma_f32 v{sxx}, -v{sx}, v{sx}, v{sxx}")
    a(f"v_max_f32 v{sxx}, 0, v{sxx}")
    a(f"v_cvt_pk_bf16_f32 v{sxx}, v{sxx}, v{sxx}")
    a(f"v_and_b32 v{sxx}, 0xffff0000, v{sxx}")
    a(f"v_add_f32 v{sxx}, {fhex(1e-5)}, v{sxx}")
    a(f"v_cvt_pk_bf16_f32 v{sxx}, v{sxx}, v{sxx}")
    a(f"v_and_b32 v{sxx}, 0xffff0000, v{sxx}")
    a(f"v_sqrt_f32 v{sxx}, v{sxx}")
    a(f"v_cvt_pk_bf16_f32 v{sx}, -v{sx}, -v{sx}")
    a(f"v_cvt_pk_bf16_f32 v{sxx}, v{sxx}, v{sxx}")
    a(f"v_and_b32 v{sxx}, 0xffff0000, v{sxx}")
    a(f"v_rcp_f32 v{rho_out}, v{sxx}")
    a(f"v_and_b32 v{negmu_out}, 0xffff0000, v{sx}")

def gen_kn(a):
    kernel_begin(a, "kn_kernel")
    a("s_cmp_ge_u32 s2, 384")
    a("s_cbranch_scc1 KN_exit")
    prof_begin(a)
    a("s_load_dwordx2 s[10:11], s[0:1], 80")
    a("v_lshrrev_b32 v1, 6, v0")
    a("v_and_b32 v2, 63, v0")
    a("v_readfirstlane_b32 s12, v1")
    a("s_lshl_b32 s13, s2, 2")
    a("s_add_u32 s13, s13, s12")
    a("s_mul_hi_u32 s14, s13, 0xAAAAAAB")
    a("v_lshrrev_b32 v4, 5, v2")
    a("v_lshlrev_b32 v7, 2, v4")
    a("v_xor_b32 v7, v7, v2")
    a("v_lshlrev_b32 v5, 4, v7")
    a("v_xor_b32 v6, 0x480, v5")
    a("v_and_b32 v3, 31, v2")
    a("v_lshlrev_b32 v3, 3, v3")
    a("s_waitcnt lgkmcnt(0)")
    srd(a, 24, 10, 11, WS_SIZE)
    a("s_lshl_b32 s15, s14, 11")
    a(f"s_add_u32 s15, s15, {WS_ST}")
    for p in range(8):
        a(f"buffer_load_dwordx2 v[{16+2*p}:{17+2*p}], v3, s[24:27], s15 offen offset:{256*p}")
    a("s_lshl_b32 s16, s13, 11")
    a(f"s_add_u32 s17, s16, {WS_Z2R}")
    a(f"s_add_u32 s18, s16, {WS_Z2N}")
    a("buffer_load_dwordx4 v[32:35], v5, s[24:27], s17 offen")
    a("buffer_load_dwordx4 v[36:39], v6, s[24:27], s17 offen")
    a("s_waitcnt vmcnt(2)")
    for p in range(1, 8):
        a(f"v_add_f32 v16, v16, v{16+2*p}")
        a(f"v_add_f32 v17, v17, v{17+2*p}")
    ln_scalars(a, 16, 17, 768, 18, 19)
    a("s_waitcnt vmcnt(0)")
    for i in range(8):
        a(f"v_lshlrev_b32 v40, 16, v{32+i}")
        a(f"v_and_b32 v41, 0xffff0000, v{32+i}")
        a("v_add_f32 v40, v40, v18")
        a("v_add_f32 v41, v41, v18")
        a("v_mul_f32 v40, v40, v19")
        a("v_mul_f32 v41, v41, v19")
        a(f"v_cvt_pk_bf16_f32 v{32+i}, v40, v41")
    a("buffer_store_dwordx4 v[32:35], v5, s[24:27], s18 offen")
    a("buffer_store_dwordx4 v[36:39], v6, s[24:27], s18 offen")
    prof_end(a, 1, 24)
    a.label("KN_exit")
    a("s_endpgm")
```

```python
WS_QKV = 0x0
WS_Z1  = 0x800000
WS_Z2R = 0xB00000
WS_Z2N = 0xE00000
WS_ST  = 0x1100000
WS_ACT = 0x1200000
WS_WF  = 0x1800000
WS_CNT = 0x19F0000
WS_SIZE = 0x2000000
SWZU = [0, 1, 2, 0, 1]
import math
QSCALE = (20 ** -0.5) * math.log2(math.e)
FL_Z = WS_CNT
FL_UO = WS_CNT + 4096
FL_W = WS_CNT + 12288
WS_REM = 0x1780000
```

```python
import sys, os
sys.path.insert(0, os.path.dirname(os.path.abspath(__file__)))
from asmlib import *
from layout import *
import k1
NAME = "parallel_sum__softmax_full_mha__mixer_gmlp__prompt"
def build(out, which=("k1", "kn", "k2", "k3")):
    ref = open(f"cdna_kernels/{NAME}.s.ref").read().split("\n")
    hdr = [l for l in ref if l.startswith(";") and "@launch" not in l and "Override" not in l and "grid=ceil" not in l]
    a = Asm()
    descs = []
    launches = []
    if "k1" in which:
        n = k1.gen_k1(a); descs.append(descriptor("k1_kernel", 256, 96)); launches.append(f"; @launch kernel=k1_kernel grid=(256,1,1) block=(512,1,1) lds={k1.K1_LDS}")
    if "kn" in which:
        import kn
        kn.gen_kn(a); descs.append(descriptor("kn_kernel", 64, 96)); launches.append(f"; @launch kernel=kn_kernel grid=(384,1,1) block=(256,1,1) lds=0")
    if "k2" in which:
        import k2
        k2.gen_k2(a); descs.append(descriptor("k2_kernel", 256, 96)); launches.append(f"; @launch kernel=k2_kernel grid=(256,1,1) block=(512,1,1) lds={k2.K2_LDS}")
    if "k3" in which:
        import k3
        nv, acc = k3.gen_k3(a); descs.append(descriptor("k3_kernel", nv, 96, acc)); launches.append(f"; @launch kernel=k3_kernel grid=(256,1,1) block=(256,1,1) lds={k3.K3_LDS}")
    txt = "\n".join(hdr) + "\n" + "\n".join(launches) + "\n"
    txt += '.amdgcn_target "amdgcn-amd-amdhsa--gfx950"\n.text\n'
    txt += a.text()
    txt += '.section .rodata,"a"\n' + "".join(descs)
    open(out, "w").write(txt)
if __name__ == "__main__":
    out = sys.argv[1] if len(sys.argv) > 1 else f"cdna_kernels/{NAME}.s"
    which = sys.argv[2].split(",") if len(sys.argv) > 2 else ("k1", "kn", "k2", "k3")
    build(out, which)
```

```python
class Asm:
    def __init__(self):
        self.L = []
        self._uid = 0
    def __call__(self, s):
        for line in s.split("\n"):
            line = line.strip()
            if line:
                self.L.append("    " + line)
    def label(self, l):
        self.L.append(l + ":")
    def raw(self, s):
        self.L.append(s)
    def uid(self, p="L"):
        self._uid += 1
        return f"{p}_{self._uid}"
    def text(self):
        return "\n".join(self.L) + "\n"

def v(i, n=1):
    return f"v{i}" if n == 1 else f"v[{i}:{i+n-1}]"
def s(i, n=1):
    return f"s{i}" if n == 1 else f"s[{i}:{i+n-1}]"

class Regs:
    def __init__(self, start, limit):
        self.n = start; self.limit = limit; self.names = {}
    def alloc(self, name, cnt=1, align=1):
        if cnt >= 2 and align < 2: align = 2
        self.n = (self.n + align - 1) // align * align
        r = self.n
        self.n += cnt
        assert self.n <= self.limit, f"out of registers at {name}: {self.n}"
        self.names[name] = (r, cnt)
        return r

def srd(a, d, lo, hi, nbytes):
    a(f"s_mov_b32 s{d}, s{lo}")
    a(f"s_and_b32 s{d+1}, s{hi}, 0xffff")
    a(f"s_mov_b32 s{d+2}, {nbytes}")
    a(f"s_mov_b32 s{d+3}, 0x00020000")

def kernel_begin(a, name):
    a.raw(f".globl {name}")
    a.raw(".p2align 8")
    a.raw(f".type {name},@function")
    a.label(name)

def descriptor(name, vgpr, sgpr=102, accum=None):
    if accum is None: accum = (vgpr + 3) // 4 * 4
    return f""".p2align 6
.amdhsa_kernel {name}
  .amdhsa_next_free_vgpr {vgpr}
  .amdhsa_next_free_sgpr {sgpr}
  .amdhsa_accum_offset {accum}
  .amdhsa_group_segment_fixed_size 0
  .amdhsa_kernarg_size 88
  .amdhsa_user_sgpr_count 2
  .amdhsa_user_sgpr_kernarg_segment_ptr 1
  .amdhsa_system_sgpr_workgroup_id_x 1
.end_amdhsa_kernel
"""
import struct
def f32bits(x):
    return struct.unpack("<I", struct.pack("<f", x))[0]
def fhex(x):
    return f"0x{f32bits(x):08x}"

def sel(a, d, A, B):
    a(f"s_mov_b32 s{d}, {B}")
    a(f"s_cmov_b32 s{d}, {A}")

import os
PROFILE = bool(int(os.environ.get("PROFILE", "0")))
WS_PROF = 0x1A00000
def prof_begin(a):
    if not PROFILE: return
    a("s_memrealtime s[84:85]")
    a("s_memtime s[86:87]")
def prof_mark(a, i):
    if not PROFILE: return
    a(f"s_memtime s[{88+2*i}:{89+2*i}]")
def prof_end(a, kidx, srdws, wave_sgpr_expr=None):
    if PROFILE:
        a("s_waitcnt vmcnt(0) lgkmcnt(0)")
        a("s_memrealtime s[80:81]")
        a("s_memtime s[82:83]")
        a("s_mov_b64 exec, 1")
        a("s_waitcnt lgkmcnt(0)")
        a("v_mov_b32 v4, s84")
        a("v_mov_b32 v5, s80")
        a("s_sub_u32 s82, s82, s86")
        a("v_mov_b32 v6, s82")
        a("s_sub_u32 s88, s88, s86")
        a("v_mov_b32 v7, s88")
        a("s_sub_u32 s90, s90, s86")
        a("s_sub_u32 s92, s92, s86")
        a("s_sub_u32 s94, s94, s86")
        a("v_mov_b32 v8, s90")
        a("v_mov_b32 v9, s92")
        a("v_mov_b32 v10, s94")
        a("v_mov_b32 v11, 0")
        a("v_lshrrev_b32 v3, 6, v0")
        a("v_lshlrev_b32 v3, 5, v3")
        a("s_lshl_b32 s80, s2, 8")
        a(f"s_add_u32 s80, s80, {WS_PROF + kidx*0x20000}")
        a(f"buffer_store_dwordx4 v[4:7], v3, s[{srdws}:{srdws+3}], s80 offen")
        a(f"buffer_store_dwordx4 v[8:11], v3, s[{srdws}:{srdws+3}], s80 offen offset:16")
    a("s_endpgm")

TRACE = bool(int(os.environ.get("TRACE", "0")))
def trace_init(a, vreg, sidx):
    if not TRACE: return
    a(f"v_mov_b32 v{vreg}, 0")
    a(f"s_mov_b32 s{sidx}, 0")
def trace(a, vreg, sidx):
    if not TRACE: return
    a("s_memtime s[96:97]")
    a(f"s_mov_b32 m0, s{sidx}")
    a("s_waitcnt lgkmcnt(0)")
    a(f"v_writelane_b32 v{vreg}, s96, m0")
    a(f"s_addk_i32 s{sidx}, 1")
def trace_dump(a, vreg, kidx, srdws):
    if not TRACE: return
    a(f"v_subrev_u32 v{vreg}, s86, v{vreg}")
    a("v_lshlrev_b32 v3, 2, v0")
    a("s_lshl_b32 s80, s2, 11")
    a(f"s_add_u32 s80, s80, {WS_PROF + 0x100000 + kidx*0x80000}")
    a(f"buffer_store_dword v{vreg}, v3, s[{srdws}:{srdws+3}], s80 offen")
```

```python
from asmlib import *
from layout import *
import math, os

XBUF = [0, 16384, 32768]
WBUF = [49152, 49152 + 32768, 49152 + 65536]
STAT = 147456
K1_LDS = STAT + 8192

STP = os.environ.get("K1_ST", "")
def gen_k1(a):
    kernel_begin(a, "k1_kernel")
    a("s_cmp_ge_u32 s2, 256")
    a("s_cbranch_scc1 K1_exit")
    prof_begin(a)
    a("s_load_dwordx4 s[4:7], s[0:1], 0")
    a("s_load_dwordx2 s[8:9], s[0:1], 32")
    a("s_load_dwordx2 s[10:11], s[0:1], 80")
    a("v_lshrrev_b32 v1, 6, v0")
    a("v_and_b32 v2, 63, v0")
    a("v_readfirstlane_b32 s12, v1")
    a("s_and_b32 s15, s2, 1")
    a("s_lshl_b32 s13, s15, 3")
    a("s_bfe_u32 s15, s2, 0x30003")
    a("s_add_u32 s13, s13, s15")
    a("s_bfe_u32 s14, s2, 0x20001")
    a("s_lshl_b32 s14, s14, 2")
    a("s_lshr_b32 s15, s2, 6")
    a("s_add_u32 s14, s14, s15")
    a("s_waitcnt lgkmcnt(0)")
    prof_mark(a, 3)
    srd(a, 16, 4, 5, 2048 * 640 * 2)
    srd(a, 24, 10, 11, WS_SIZE)
    a("s_cmp_lt_u32 s14, 8")
    a("s_cselect_b32 s20, s6, s8")
    a("s_cselect_b32 s21, s7, s9")
    a("s_and_b32 s21, s21, 0xffff")
    a("s_cmp_lt_u32 s14, 8")
    sel(a, 22, 640*1920*2, 640*1536*2)
    a("s_mov_b32 s23, 0x00020000")
    sel(a, 28, 3840, 3072)
    a("s_mul_i32 s29, s14, 480")
    a("s_and_b32 s30, s29, 63")
    a("s_and_b32 s29, s29, 0xffffffc0")
    a("s_sub_u32 s15, s14, 8")
    a("s_mul_i32 s15, s15, 384")
    a("s_cmp_lt_u32 s14, 8")
    a("s_cselect_b32 s29, s29, s15")
    a("s_cselect_b32 s30, s30, 0")
    a("s_cmp_ge_u32 s12, 4")
    a("s_cbranch_scc0 K1_compute")
    a("s_sub_u32 s12, s12, 4")
    VX, VW = 4, 8
    a("v_lshrrev_b32 v3, 3, v2")
    a("v_lshrrev_b32 v12, 4, v2")
    a("v_and_b32 v13, 7, v2")
    a("v_lshrrev_b32 v14, 5, v2")
    a("v_and_b32 v15, 31, v2")
    a("s_movk_i32 s15, 1280")
    for jj in range(4):
        a(f"v_add_u32 v16, {8*jj}, v3")
        a(f"v_mul_lo_u32 v16, v16, s15")
        a(f"v_add_u32 v17, {4*jj}, v12")
        a(f"v_and_b32 v17, 7, v17")
        a(f"v_xor_b32 v17, v17, v13")
        a(f"v_lshl_add_u32 v16, v17, 4, v16")
        a(f"v_subrev_u32 v{VX+jj}, {1024*jj}, v16")
        a(f"v_add_u32 v16, {2*jj}, v14")
        a(f"v_and_b32 v17, 3, v16")
        a(f"v_mul_lo_u32 v16, v16, s28")
        a(f"v_lshlrev_b32 v17, 2, v17")
        a(f"v_xor_b32 v17, v17, v15")
        a(f"v_lshl_add_u32 v16, v17, 4, v16")
        a(f"v_subrev_u32 v{VW+jj}, {1024*jj}, v16")
    a("s_lshl_b32 s31, s13, 7")
    a("s_lshl_b32 s15, s12, 5")
    a("s_add_u32 s31, s31, s15")
    a("s_mul_i32 s31, s31, 1280")
    a("s_lshl_b32 s15, s12, 4")
    a("s_mul_i32 s32, s15, s28")
    a("s_add_u32 s32, s32, s29")
    a("s_lshl_b32 s33, s28, 3")
    a("s_lshl_b32 s34, s28, 6")
    a("s_lshl_b32 s35, s12, 12")
    a("s_lshl_b32 s36, s12, 13")
    a(f"s_add_u32 s36, s36, {WBUF[0]}")
    a("s_mov_b32 s37, 0")
    def issue_ops():
        if os.environ.get("K1_NODMA"): return []
        o = []
        for jj in range(4):
            o.append(("s_mov_b32 m0, s35\ns_add_u32 s38, s32, s33\n" if jj == 0 else "") + f"buffer_load_dwordx4 v{VX+jj}, s[16:19], s31 offen offset:{1024*jj} lds")
        for jj in range(4):
            o.append(("s_mov_b32 m0, s36\ns_add_u32 s31, s31, 128\n" if jj == 0 else "") + f"buffer_load_dwordx4 v{VW+jj}, s[20:23], s32 offen offset:{1024*jj} lds")
        for jj in range(4):
            o.append(("s_add_u32 m0, s36, 4096\ns_add_u32 s32, s32, s34\n" if jj == 0 else "") + f"buffer_load_dwordx4 v{VW+jj}, s[20:23], s38 offen offset:{1024*jj} lds")
        o[-1] += "\ns_add_u32 s37, s37, 1\ns_cmp_eq_u32 s37, 3\ns_movk_i32 s39, 0x4000\ns_cmovk_i32 s39, 0x8000\ns_cmov_b32 s37, 0\ns_add_u32 s35, s35, s39\ns_lshl_b32 s39, s39, 1\ns_add_u32 s36, s36, s39"
        return o
    def issue():
        for o in issue_ops(): a(o)
    for i in range(16): a(f"v_mov_b32 v{32+i}, 0")
    a("v_lshl_add_u32 v20, v2, 4, s35")
    a("s_mov_b32 s41, 0")
    def xstats(dma):
        dma = list(dma)
        for jj in range(4):
            a(f"ds_read_b128 v[{48+4*jj}:{51+4*jj}], v20 offset:{1024*jj}")
        a("s_add_u32 s41, s41, 1")
        a("s_cmp_eq_u32 s41, 3")
        a("s_movk_i32 s42, 0x4000")
        a("s_cmovk_i32 s42, 0x8000")
        a("s_cmov_b32 s41, 0")
        a("v_add_u32 v20, s42, v20")
        for jj in range(4):
            if dma: a(dma.pop(0))
            a(f"s_waitcnt lgkmcnt({3-jj})")
            for i in range(4):
                a(f"v_lshlrev_b32 v{64+2*i}, 16, v{48+4*jj+i}")
                a(f"v_and_b32 v{65+2*i}, 0xffff0000, v{48+4*jj+i}")
            for i in range(4):
                if dma and i % 2 == 0: a(dma.pop(0))
                a(f"v_add_f32 v{32+4*jj}, v{32+4*jj}, v{64+2*i}")
                a(f"v_add_f32 v{33+4*jj}, v{33+4*jj}, v{65+2*i}")
                a(f"v_fmac_f32 v{34+4*jj}, v{64+2*i}, v{64+2*i}")
                a(f"v_fmac_f32 v{35+4*jj}, v{65+2*i}, v{65+2*i}")
        assert not dma
    issue()
    issue()
    prof_mark(a, 0)
    a("s_mov_b32 s40, 0")
    a.label("K1_ld_loop")
    a("s_waitcnt vmcnt(12)")
    a("s_barrier")
    xstats(issue_ops())
    a("s_add_u32 s40, s40, 1")
    a("s_cmp_lt_u32 s40, 8")
    a("s_cbranch_scc1 K1_ld_loop")
    a("s_waitcnt vmcnt(12)")
    a.label("K1_ld_tail")
    a("s_barrier")
    xstats([])
    a("s_add_u32 s40, s40, 1")
    a("s_waitcnt vmcnt(0)")
    a("s_cmp_lt_u32 s40, 10")
    a("s_cbranch_scc1 K1_ld_tail")
    for jj in range(4):
        a(f"v_add_f32 v{48+2*jj}, v{32+4*jj}, v{33+4*jj}")
        a(f"v_add_f32 v{49+2*jj}, v{34+4*jj}, v{35+4*jj}")
    for dpp in ("quad_perm:[1,0,3,2]", "quad_perm:[2,3,0,1]", "row_half_mirror"):
        a("s_nop 0")
        for i in range(8):
            a(f"v_add_f32_dpp v{48+i}, v{48+i}, v{48+i} {dpp} row_mask:0xf bank_mask:0xf")
    a("s_lshl_b32 s15, s12, 8")
    a(f"s_add_u32 s15, s15, {STAT}")
    a("v_lshl_add_u32 v21, v3, 3, s15")
    for jj in range(4):
        a(f"ds_write_b64 v21, v[{48+2*jj}:{49+2*jj}] offset:{64*jj}")
    a("s_waitcnt lgkmcnt(0)")
    a("s_barrier")
    prof_end(a, 0, 24)

    a.label("K1_compute")
    R = Regs(3, 256)
    T = [R.alloc(f"t{i}") for i in range(9)]
    XA = R.alloc("xa", 4)
    WE = R.alloc("we", 4)
    WO = R.alloc("wo", 4)
    SX = R.alloc("sx", 4, 4)
    CS = R.alloc("cs", 16, 4)
    SEL = R.alloc("sel", 4, 4)
    ONES = R.alloc("ones")
    XF = [[R.alloc(f"xf{b}{i}", 4, 4) for i in range(2)] for b in range(2)]
    WF = [[R.alloc(f"wf{b}{i}", 4, 4) for i in range(4)] for b in range(2)]
    ACC = R.alloc("acc", 128, 4)
    EX = R.alloc("ex", 28, 4)
    def acc(ai, t): return ACC + (ai * 4 + t) * 16
    a("s_lshr_b32 s31, s12, 1")
    a("s_and_b32 s32, s12, 1")
    a("s_xor_b32 s33, s31, s32")
    a("v_and_b32 v3, 31, v2")
    a("v_lshrrev_b32 v4, 5, v2")
    a("v_bfe_u32 v5, v2, 1, 3")
    a("s_lshl_b32 s15, s31, 13")
    a("v_lshl_add_u32 v6, v3, 7, s15")
    a("v_xor_b32 v5, v5, v4")
    a("s_lshl_b32 s15, s33, 1")
    a("v_xor_b32 v5, s15, v5")
    for u in range(4):
        a(f"v_xor_b32 v7, {2*u}, v5")
        a(f"v_lshl_add_u32 v{XA+u}, v7, 4, v6")
    a("s_cmp_lt_u32 s14, 8")
    sel(a, 15, 240, 192)
    a("s_mul_i32 s15, s15, s32")
    a("s_add_u32 s15, s15, s30")
    a("v_bfe_u32 v5, v2, 2, 2")
    a("v_and_b32 v6, 3, v2")
    a("v_lshlrev_b32 v6, 3, v6")
    a("v_bfe_u32 v7, v2, 4, 1")
    a("v_lshl_add_u32 v6, v7, 5, v6")
    a("v_add_u32 v6, s15, v6")
    a("s_add_u32 s38, s15, 232")
    a("v_lshl_add_u32 v7, v4, 3, v5")
    a("v_lshlrev_b32 v7, 9, v7")
    a(f"v_add_u32 v7, {WBUF[0]}, v7")
    a("s_lshl_b32 s15, s33, 13")
    for t in range(4):
        a(f"v_add_u32 v8, {64*t}, v6")
        if t == 3: a("v_min_u32 v8, s38, v8")
        a("v_lshrrev_b32 v9, 6, v8")
        a("v_xor_b32 v9, v9, v5")
        a("v_and_b32 v8, 63, v8")
        a("v_lshl_add_u32 v8, v9, 6, v8")
        a("v_add_u32 v8, v8, v7")
        a(f"v_add_u32 v{WE+t}, s15, v8")
        a(f"v_subrev_u32 v{WO+t}, s15, v8")
    a(f"v_mov_b32 v{ONES}, 0x3f803f80")
    for i in range(16):
        a(f"v_mov_b32 v{CS+i}, 0")
    a("v_bfe_u32 v8, v2, 4, 1")
    a("v_and_b32 v9, 15, v2")
    a("v_cmp_eq_u32 vcc, v8, v9")
    a("s_nop 1")
    a(f"v_cndmask_b32 v{SEL}, 0, v{ONES}, vcc")
    for i in range(1, 4): a(f"v_mov_b32 v{SEL+i}, v{SEL}")
    for i in range(128):
        a(f"v_mov_b32 v{ACC+i}, 0")
    a("s_mov_b32 s34, 0")
    a("s_mov_b32 s35, 0")

    def reads(u, b, NT):
        W = WE if u % 2 == 0 else WO
        r = [f"ds_read_b128 {v(XF[b][0],4)}, v{XA+u}"]
        def wr(t):
            return [f"ds_read_b64_tr_b16 {v(WF[b][t],2)}, v{W+t} offset:{u*8192}",
                    f"ds_read_b64_tr_b16 {v(WF[b][t]+2,2)}, v{W+t} offset:{u*8192+2048}"]
        r += wr(0) + wr(1)
        r += [f"ds_read_b128 {v(XF[b][1],4)}, v{XA+u} offset:4096"]
        for t in range(2, NT): r += wr(t)
        return r

    def mainloop(NT, tag):
        a("s_barrier")
        prof_mark(a, 0)
        for ins in reads(0, 0, NT): a(ins)
        a.label(f"K1_loop_{tag}")
        a("s_add_u32 s35, s35, 1")
        a("s_cmp_eq_u32 s35, 3")
        a("s_movk_i32 s36, 0x4000")
        a("s_cmovk_i32 s36, 0x8000")
        a("s_cmov_b32 s35, 0")
        a("s_lshl_b32 s37, s36, 1")
        for u in range(4):
            b = u & 1
            order = [(0,0),(1,0),(0,1),(1,1)] + ([(2,0),(3,0),(2,1),(3,1)] if NT == 4 else [(2,0),(2,1)])
            rd = reads((u + 1) & 3, b ^ 1, NT)
            st = []
            if u % 2 == 0:
                st = [f"v_mfma_f32_16x16x32_bf16 {v(CS+4*t,4)}, {v(SEL,4)}, {v(WF[b][t],4)}, {v(CS+4*t,4)}" for t in range(NT)]
            if os.environ.get("K1_NOSTAT"): st = []
            if os.environ.get("K1_NORD"): rd = []
            if os.environ.get("K1_NOTR"): rd = [x for x in rd if "tr_b16" not in x]
            if os.environ.get("K1_NOB128"): rd = [x for x in rd if "b128" not in x]
            upd = []
            if u == 0: upd = [f"v_add_u32 v{XA+0}, s36, v{XA+0}", f"v_add_u32 v{XA+1}, s36, v{XA+1}"]
            if u == 1: upd = [f"v_add_u32 v{XA+2}, s36, v{XA+2}"] + [f"v_add_u32 v{WE+t}, s37, v{WE+t}" for t in range(NT)]
            if u == 2: upd = [f"v_add_u32 v{XA+3}, s36, v{XA+3}"] + [f"v_add_u32 v{WO+t}, s37, v{WO+t}" for t in range(NT)]
            a("s_waitcnt lgkmcnt(0)")
            n = len(order)
            first_rd_gap = 1 if u == 3 else 0
            rdi = 0; sti = 0
            per_st = (len(st) + n - 1) // n
            for mi, (t, ai) in enumerate(order):
                a(f"v_mfma_f32_32x32x16_bf16 {v(acc(ai,t),16)}, {v(WF[b][t],4)}, {v(XF[b][ai],4)}, {v(acc(ai,t),16)}")
                if u == 3 and mi == 0:
                    a("s_barrier")
                if mi >= first_rd_gap:
                    for _ in range(2):
                        if rdi < len(rd):
                            a(rd[rdi]); rdi += 1
                if mi % 2 == 1 and sti < len(st):
                    a(st[sti]); sti += 1
                if rdi >= len(rd) and upd and mi >= n - 2:
                    k = len(upd) if mi == n - 1 else (len(upd) + 1) // 2
                    for ins in upd[:k]: a(ins)
                    upd = upd[k:]
            assert rdi == len(rd) and sti == len(st) and not upd, (rdi, len(rd), sti, len(st), upd)
        a("s_add_u32 s34, s34, 1")
        a("s_cmp_lt_u32 s34, 10")
        a(f"s_cbranch_scc1 K1_loop_{tag}")

    RHO = [EX + 0, EX + 2]
    def stats_epilogue(NT):
        prof_mark(a, 1)
        CSA = STAT + 2048
        E = XF[0][0]
        a("s_lshl_b32 s15, s12, 9")
        a(f"s_add_u32 s15, s15, {CSA}")
        a("v_lshl_add_u32 v5, v2, 2, s15")
        a("v_and_b32 v3, 31, v2")
        a("v_lshl_add_u32 v6, v3, 2, s15")
        a("v_xor_b32 v7, 0x400, v6")
        a("s_lshl_b32 s15, s31, 9")
        a(f"s_add_u32 s15, s15, {STAT}")
        a("v_lshl_add_u32 v8, v3, 3, s15")
        a("s_waitcnt lgkmcnt(0)")
        a(f"ds_read_b64 {v(SX,2)}, v8")
        a(f"ds_read_b64 {v(SX+2,2)}, v8 offset:256")
        a("s_mov_b64 exec, 0xffff")
        for t in range(NT):
            a(f"ds_write2_b32 v5, v{CS+4*t}, v{CS+4*t+1} offset0:{32*t} offset1:{32*t+16}")
        a("s_mov_b64 exec, -1")
        a("s_waitcnt lgkmcnt(0)")
        a("s_barrier")
        for t in range(NT):
            a(f"ds_read_b32 v{E+12+t}, v6 offset:{128*t}")
            a(f"ds_read_b32 v{E+16+t}, v7 offset:{128*t}")
        BX = E + 24
        a("v_cmp_gt_u32 vcc, 32, v2")
        for ai in range(2):
            sx, sxx = SX + 2*ai, SX + 2*ai + 1
            a(f"v_mul_f32 v{sx}, {fhex(1.0/640)}, v{sx}")
            a(f"v_mul_f32 v{sxx}, {fhex(1.0/640)}, v{sxx}")
            a(f"v_fma_f32 v{sxx}, -v{sx}, v{sx}, v{sxx}")
            a(f"v_max_f32 v{sxx}, 0, v{sxx}")
            a(f"v_cvt_pk_bf16_f32 v{sxx}, v{sxx}, v{sxx}")
            a(f"v_and_b32 v{sxx}, 0xffff0000, v{sxx}")
            a(f"v_add_f32 v{sxx}, {fhex(1e-5)}, v{sxx}")
            a(f"v_cvt_pk_bf16_f32 v{sxx}, v{sxx}, v{sxx}")
            a(f"v_and_b32 v{sxx}, 0xffff0000, v{sxx}")
            a(f"v_sqrt_f32 v{sxx}, v{sxx}")
            a(f"v_cvt_pk_bf16_f32 v{sx}, -v{sx}, -v{sx}")
            a(f"v_cvt_pk_bf16_f32 v{sxx}, v{sxx}, v{sxx}")
            a(f"v_and_b32 v{sxx}, 0xffff0000, v{sxx}")
            a(f"v_rcp_f32 v{RHO[ai]}, v{sxx}")
            a(f"v_cndmask_b32 v{BX+2*ai}, 0, v{sx}, vcc")
            a(f"v_and_b32 v{BX+2*ai+1}, 0xffff, v{BX+2*ai}")
        a("s_waitcnt lgkmcnt(0)")
        AX = E + 28
        for t in range(NT):
            c = CS + t
            a(f"v_add_f32 v{c}, v{E+12+t}, v{E+16+t}")
            a(f"v_cvt_pk_bf16_f32 v3, v{c}, v{c}")
            a(f"v_and_b32 v3, 0xffff0000, v3")
            a(f"v_sub_f32 v3, v{c}, v3")
            a(f"v_cvt_pk_bf16_f32 v{AX+2*t}, v{c}, v3")
            a(f"v_and_b32 v4, 0xffff0000, v{AX+2*t}")
            a(f"v_sub_f32 v3, v3, v4")
            a(f"v_cvt_pk_bf16_f32 v{AX+2*t+1}, v3, 0")
        a("s_nop 1")
        for t in range(NT):
            for ai in range(2):
                a(f"v_mfma_f32_32x32x8_bf16 {v(acc(ai,t),16)}, {v(AX+2*t,2)}, {v(BX+2*ai,2)}, {v(acc(ai,t),16)}")

    a("s_cmp_lt_u32 s14, 8")
    a("s_cbranch_scc0 K1_z")
    mainloop(4, "q")
    stats_epilogue(4)
    a("v_lshlrev_b32 v5, 4, v2")
    a("v_xor_b32 v6, 64, v5")
    a("v_xor_b32 v7, 128, v5")
    a("s_mul_i32 s36, s14, 30")
    a("s_mul_i32 s15, s32, 15")
    a("s_add_u32 s36, s36, s15")
    a("s_lshl_b32 s37, s36, 5")
    a("s_lshl_b32 s15, s13, 1")
    a("s_add_u32 s15, s15, s31")
    a("s_add_u32 s37, s37, s15")
    a("s_lshl_b32 s37, s37, 10")
    RS = [EX + 4, EX + 6]
    ST = [EX + 8, EX + 12, EX + 16, EX + 20]
    for Q in range(15):
        t, q = Q // 4, Q % 4
        pp, U = Q // 5, Q % 5
        if U == 0:
            a(f"s_cmp_lt_u32 s36, {80 - 5*pp}")
            a(f"s_cselect_b32 s15, {fhex(QSCALE)}, 1.0")
            a(f"v_mul_f32 v{RS[0]}, s15, v{RHO[0]}")
            a(f"v_mul_f32 v{RS[1]}, s15, v{RHO[1]}")
            if Q == 0:
                a("s_nop 7")
        S = ST[Q % 4]
        for ai in range(2):
            A = acc(ai, t) + 4*q
            a(f"v_pk_mul_f32 {v(A,2)}, {v(A,2)}, {v(RS[ai],2)} op_sel_hi:[1,0]")
            a(f"v_pk_mul_f32 {v(A+2,2)}, {v(A+2,2)}, {v(RS[ai],2)} op_sel_hi:[1,0]")
        for ai in range(2):
            A = acc(ai, t) + 4*q
            a(f"v_cvt_pk_bf16_f32 v{S+2*ai}, v{A}, v{A+1}")
            a(f"v_cvt_pk_bf16_f32 v{S+2*ai+1}, v{A+2}, v{A+3}")
        a("s_nop 1")
        a(f"v_permlane32_swap_b32 v{S}, v{S+2}")
        a(f"v_permlane32_swap_b32 v{S+1}, v{S+3}")
        a(f"buffer_store_dwordx4 {v(S,4)}, v{5+SWZU[U]}, s[24:27], s37 offen{STP}")
        a("s_add_u32 s37, s37, 32768")
    prof_mark(a, 2)
    prof_end(a, 0, 24)

    a.label("K1_z")
    mainloop(3, "z")
    stats_epilogue(3)
    a("v_lshrrev_b32 v4, 5, v2")
    a("v_lshlrev_b32 v7, 2, v4")
    a("v_xor_b32 v7, v7, v2")
    a("v_lshlrev_b32 v5, 4, v7")
    a("v_xor_b32 v6, 0x480, v5")
    a("s_cmp_lt_u32 s14, 12")
    sel(a, 37, WS_Z1, WS_Z2R)
    a("s_lshl_b32 s36, s13, 2")
    a("s_lshl_b32 s15, s31, 1")
    a("s_add_u32 s36, s36, s15")
    a("s_mul_i32 s38, s36, 24")
    a("s_and_b32 s15, s14, 3")
    a("s_lshl_b32 s39, s15, 1")
    a("s_add_u32 s39, s39, s32")
    a("s_mul_i32 s15, s39, 3")
    a("s_add_u32 s38, s38, s15")
    a("s_lshl_b32 s38, s38, 11")
    a("s_add_u32 s37, s37, s38")
    c0 = -2.0 * math.sqrt(2.0 / math.pi) * math.log2(math.e)
    c1 = c0 * 0.044715
    K0, K1c, ONE = EX + 4, EX + 6, EX + 8
    a(f"v_mov_b32 v{K0}, {fhex(c0)}")
    a(f"v_mov_b32 v{K1c}, {fhex(c1)}")
    a(f"v_mov_b32 v{ONE}, 1.0")
    for i in range(4): a(f"v_mov_b32 v{SX+i}, 0")
    TM = XF[0][0]
    PK = [EX + 12, EX + 16, EX + 20, EX + 24]
    a("s_nop 4")
    cnt = 0
    for ai in range(2):
        for t in range(3):
            for u in range(2):
                A = acc(ai, t) + 8*u
                Tm = TM + (cnt % 2) * 8
                S = PK[cnt % 4]
                bc = "op_sel_hi:[1,0]"
                for i in range(4):
                    a(f"v_pk_mul_f32 {v(A+2*i,2)}, {v(A+2*i,2)}, {v(RHO[ai],2)} {bc}")
                for i in range(4):
                    a(f"v_pk_mul_f32 {v(Tm+2*i,2)}, {v(A+2*i,2)}, {v(A+2*i,2)}")
                for i in range(4):
                    a(f"v_pk_fma_f32 {v(Tm+2*i,2)}, {v(Tm+2*i,2)}, {v(K1c,2)}, {v(K0,2)} op_sel_hi:[1,0,0]")
                for i in range(4):
                    a(f"v_pk_mul_f32 {v(Tm+2*i,2)}, {v(Tm+2*i,2)}, {v(A+2*i,2)}")
                for i in range(8):
                    a(f"v_exp_f32 v{Tm+i}, v{Tm+i}")
                for i in range(4):
                    a(f"v_pk_add_f32 {v(Tm+2*i,2)}, {v(Tm+2*i,2)}, {v(ONE,2)} {bc}")
                for i in range(8):
                    a(f"v_rcp_f32 v{Tm+i}, v{Tm+i}")
                for i in range(4):
                    a(f"v_pk_mul_f32 {v(A+2*i,2)}, {v(A+2*i,2)}, {v(Tm+2*i,2)}")
                for i in range(4):
                    a(f"v_cvt_pk_bf16_f32 v{S+i}, v{A+2*i}, v{A+2*i+1}")
                a(f"buffer_store_dwordx4 {v(S,4)}, v{5+u}, s[24:27], s37 offen{STP}")
                for i in range(4):
                    a(f"v_dot2c_f32_bf16 v{SX+2*ai}, v{S+i}, v{ONES}")
                    a(f"v_dot2c_f32_bf16 v{SX+2*ai+1}, v{S+i}, v{S+i}")
                cnt += 1
            a(f"s_add_u32 s37, s37, {2048 if t < 2 else 24*2048 - 2*2048}")
    a("s_cmp_lt_u32 s14, 12")
    a("s_cbranch_scc1 K1_done")
    a("s_nop 2")
    a(f"v_permlane32_swap_b32 v{SX}, v{SX+2}")
    a(f"v_permlane32_swap_b32 v{SX+1}, v{SX+3}")
    a(f"v_add_f32 v{SX}, v{SX}, v{SX+2}")
    a(f"v_add_f32 v{SX+1}, v{SX+1}, v{SX+3}")
    a("v_and_b32 v3, 31, v2")
    a("v_lshlrev_b32 v3, 3, v3")
    a("v_lshl_add_u32 v3, v4, 11, v3")
    a("s_lshl_b32 s36, s36, 3")
    a("s_add_u32 s36, s36, s39")
    a("s_lshl_b32 s36, s36, 8")
    a(f"s_add_u32 s36, s36, {WS_ST}")
    a(f"buffer_store_dwordx2 {v(SX,2)}, v3, s[24:27], s36 offen")
    a.label("K1_done")
    prof_mark(a, 2)
    prof_end(a, 0, 24)
    a.label("K1_exit")
    a("s_endpgm")
    return R.n
```

```python
from asmlib import *
from layout import *
import os

SLOT = 13312
CPL = 12288
GR0 = 3 * SLOT
GSLOT = 10240
GRING = 3 * GSLOT
FLAGS = GR0 + 4 * GRING
K2_LDS = FLAGS + 64
BIAS = 80.0
THR = 2.0 ** (60)
ACT_T16 = 44 * 1024

def gen_k2(a, kidx=2):
    kernel_begin(a, "k2_kernel")
    a("s_cmp_ge_u32 s2, 256")
    a("s_cbranch_scc1 K2_exit")
    prof_begin(a)
    a("s_load_dwordx2 s[4:5], s[0:1], 16")
    a("s_load_dwordx4 s[44:47], s[0:1], 40")
    a("s_load_dwordx2 s[8:9], s[0:1], 56")
    a("s_load_dwordx2 s[10:11], s[0:1], 80")
    a("v_lshrrev_b32 v1, 6, v0")
    a("v_and_b32 v2, 63, v0")
    a("v_readfirstlane_b32 s12, v1")
    a("s_and_b32 s13, s2, 7")
    a("s_lshl_b32 s13, s13, 2")
    a("s_lshr_b32 s15, s2, 6")
    a("s_add_u32 s13, s13, s15")
    a("s_bfe_u32 s14, s2, 0x30003")
    a("s_and_b32 s32, s13, 1")
    a("s_lshr_b32 s33, s13, 1")
    a("s_mul_i32 s33, s33, 5")
    a("s_mul_i32 s34, s32, 3")
    a("s_add_u32 s34, s34, s33")
    a("s_add_u32 s33, s33, 2")
    a("v_and_b32 v3, 31, v2")
    a("v_lshrrev_b32 v4, 5, v2")
    a("s_waitcnt lgkmcnt(0)")
    srd(a, 24, 10, 11, WS_SIZE)
    a("s_cmp_ge_u32 s12, 4")
    a("s_cbranch_scc1 K2_G")
    gen_A(a, kidx)
    a.label("K2_G")
    gen_G(a, kidx)
    a.label("K2_exit")
    a("s_endpgm")

def gen_A(a, kidx):
    R = Regs(12, 256)
    KA = R.alloc("ka"); KR = R.alloc("kr"); VA = R.alloc("va", 2)
    M = R.alloc("m", 4)
    QM = [R.alloc(f"qm{i}", 4, 4) for i in range(4)]
    QR = [R.alloc(f"qr{i}", 2) for i in range(4)]
    KM = [R.alloc(f"km{i}", 4, 4) for i in range(2)]
    KRm = [R.alloc(f"krm{i}", 2) for i in range(2)]
    VF = [R.alloc(f"vf{i}", 8, 4) for i in range(2)]
    S = [R.alloc(f"s{i}", 16, 4) for i in range(2)]
    P = [R.alloc(f"p{i}", 8, 4) for i in range(2)]
    O = [R.alloc(f"o{i}", 16, 4) for i in range(4)]
    X = R.alloc("x", 32, 4)
    a("s_and_b32 s35, s12, 1")
    a("s_lshr_b32 s36, s12, 1")
    a("s_lshl_b32 s37, s14, 2")
    a("s_lshl_b32 s15, s35, 1")
    a("s_add_u32 s37, s37, s15")
    a("s_add_u32 s38, s37, s36")
    a("s_xor_b32 s39, s38, 1")
    a("v_lshlrev_b32 v5, 2, v4")
    a("v_xor_b32 v5, v5, v3")
    a("v_lshlrev_b32 v5, 4, v5")
    a("v_lshl_add_u32 v6, v4, 15, v5")
    a("v_xor_b32 v7, 8, v3")
    a("v_lshlrev_b32 v7, 4, v7")
    a("s_lshl_b32 s15, s32, 3")
    a("v_add_u32 v7, s15, v7")
    a("s_lshl_b32 s40, s34, 5")
    a("s_add_u32 s41, s40, s39")
    a("s_add_u32 s40, s40, s38")
    a("s_lshl_b32 s40, s40, 10")
    a("s_lshl_b32 s41, s41, 10")
    a("s_lshl_b32 s42, s33, 5")
    a("s_add_u32 s43, s42, s39")
    a("s_add_u32 s42, s42, s38")
    a("s_lshl_b32 s42, s42, 10")
    a("s_lshl_b32 s43, s43, 10")
    for i in range(4):
        a(f"v_mov_b32 v{QR[i]}, 0")
        a(f"v_mov_b32 v{QR[i]+1}, 0")
    for i in range(4):
        a(f"buffer_load_dwordx4 {v(QM[i],4)}, v6, s[24:27], s{40+(i>>1)} offen offset:{512*(i&1)}")
    a("s_mov_b32 exec_hi, 0")
    for i in range(4):
        a(f"buffer_load_dwordx2 {v(QR[i],2)}, v7, s[24:27], s{42+(i>>1)} offen offset:{512*(i&1)}")
    a("s_mov_b32 exec_hi, -1")
    a(f"v_mov_b32 v{X}, 0x3f80")
    a(f"v_mov_b32 v{X+1}, 0")
    a(f"v_mov_b32 v{X+2}, 0x3f80")
    a(f"v_mov_b32 v{X+3}, 0")
    a("s_min_u32 s15, s12, 2")
    a(f"s_mul_i32 s15, s15, {SLOT}")
    a(f"s_add_u32 s15, s15, {CPL}")
    a("v_lshl_add_u32 v8, v2, 4, s15")
    a(f"ds_write_b128 v8, {v(X,4)}")
    a("s_lshl_b32 s15, s12, 2")
    a(f"s_add_u32 s15, s15, {FLAGS}")
    a(f"v_mov_b32 v8, s15")
    a(f"ds_write_b32 v8, v{X+1}")
    a("s_mul_i32 s15, s36, 6144")
    a(f"v_lshl_add_u32 v{KA}, v4, 10, v5")
    a(f"v_add_u32 v{KA}, s15, v{KA}")
    a("s_add_u32 s48, s15, 2048")
    a("v_add_u32 v8, s48, v7")
    a(f"v_lshlrev_b32 v9, 4, v3")
    a(f"v_add_u32 v9, {CPL}, v9")
    a("v_cmp_gt_u32 vcc, 32, v2")
    a("v_bfe_u32 v10, v2, 2, 2")
    a("v_lshl_add_u32 v10, v4, 2, v10")
    a(f"v_cndmask_b32 v{KR}, v9, v8, vcc")
    a("v_bfe_u32 v8, v2, 4, 1")
    a("v_and_b32 v9, 3, v2")
    a("v_lshl_add_u32 v8, v8, 2, v9")
    a("v_lshrrev_b32 v9, 1, v8")
    a("v_cmp_lt_u32 vcc, 4, v8")
    a("v_and_b32 v11, 1, v8")
    a("s_nop 0")
    a("v_cndmask_b32 v9, v9, 3, vcc")
    a("v_cmp_eq_u32 s[50:51], 4, v8")
    a("v_mov_b32 v8, s32")
    a("s_nop 0")
    a("v_cndmask_b32 v11, v11, v8, s[50:51]")
    a("v_lshlrev_b32 v8, 2, v9")
    a("v_xor_b32 v8, v8, v10")
    a("v_lshlrev_b32 v8, 4, v8")
    a("v_lshl_add_u32 v8, v11, 3, v8")
    a("v_lshlrev_b32 v9, 10, v9")
    a("s_add_u32 s48, s15, 3072")
    a("v_add_u32 v9, s48, v9")
    a(f"v_mov_b32 v11, {CPL}")
    a("v_cndmask_b32 v9, v9, v11, vcc")
    a(f"v_add_u32 v{VA}, v8, v9")
    a(f"v_xor_b32 v{VA+1}, 0x80, v{VA}")
    for i in range(8):
        a(f"v_mov_b32 v{P[1]+i}, 0")
        a(f"v_mov_b32 v{VF[1]+i}, 0")
    for i in range(4):
        for j in range(16): a(f"v_mov_b32 v{O[i]+j}, 0")
    a("s_mov_b32 s48, 0")
    a("s_mov_b32 s49, 0")
    a(f"s_mov_b32 s52, {fhex(THR)}")
    a("s_waitcnt vmcnt(0) lgkmcnt(0)")
    a("s_barrier")
    prof_mark(a, 0)
    def rdK(kt):
        return [f"ds_read_b128 {v(KM[kt],4)}, v{KA} offset:{512*kt}", f"ds_read_b64 {v(KRm[kt],2)}, v{KR} offset:{512*kt}"]
    def rdV(kt):
        return [f"ds_read_b64_tr_b16 {v(VF[kt]+4*j+2*e,2)}, v{VA+e} offset:{512*kt+256*j}" for j in range(2) for e in range(2)]
    for ins in rdK(0) + rdK(1) + rdV(0): a(ins)
    a("s_waitcnt lgkmcnt(6)")
    TS = [S[0], S[1], X, X + 16]
    for i in range(4):
        a(f"v_mfma_f32_32x32x16_bf16 {v(TS[i],16)}, {v(KM[0],4)}, {v(QM[i],4)}, 0")
        a(f"v_mfma_f32_32x32x8_bf16 {v(TS[i],16)}, {v(KRm[0],2)}, {v(QR[i],2)}, {v(TS[i],16)}")
    a("s_nop 5")
    def set_m(i, src):
        a(f"v_cvt_pk_bf16_f32 v{src}, -v{src}, -v{src}")
        a(f"v_and_b32 v{M+i}, 0xffff0000, v{src}")
        a(f"v_xor_b32 v{M+i}, 0x80000000, v{M+i}")
        a("s_mov_b32 exec_lo, 0")
        a(f"v_and_b32 v{QR[i]}, 0xffff, v{src}")
        a("s_mov_b32 exec_lo, -1")
    for i in range(4):
        t = TS[i]
        a(f"v_max3_f32 v{t}, v{t}, v{t+1}, v{t+2}")
        for j in range(3, 15, 2):
            a(f"v_max3_f32 v{t}, v{t}, v{t+j}, v{t+j+1}")
        a(f"v_max_f32 v{t}, v{t}, v{t+15}")
        a(f"v_mov_b32 v{t+1}, v{t}")
    a("s_nop 0")
    for i in range(4):
        a(f"v_permlane32_swap_b32 v{TS[i]}, v{TS[i]+1}")
    for i in range(4):
        t = TS[i]
        a(f"v_max_f32 v{t}, v{t}, v{t+1}")
        a(f"v_add_f32 v{t}, {fhex(BIAS)}, v{t}")
        a(f"v_rndne_f32 v{t}, v{t}")
        a(f"v_cvt_pk_bf16_f32 v{5+i}, -v{t}, -v{t}")
    a("s_mov_b32 exec_lo, 0")
    for i in range(4):
        a(f"v_and_b32 v{QR[i]}, 0xffff, v{5+i}")
    a("s_mov_b32 exec_lo, -1")
    a(f"v_mfma_f32_32x32x16_bf16 {v(S[0],16)}, {v(KM[0],4)}, {v(QM[0],4)}, 0")
    a(f"v_mfma_f32_32x32x8_bf16 {v(S[0],16)}, {v(KRm[0],2)}, {v(QR[0],2)}, {v(S[0],16)}")
    for i in range(4):
        a(f"v_and_b32 v{M+i}, 0xffff0000, v{5+i}")
        a(f"v_xor_b32 v{M+i}, 0x80000000, v{M+i}")
    a("s_nop 2")
    a("s_waitcnt lgkmcnt(0)")
    prof_mark(a, 1)
    rescale = []
    trace_init(a, 250, 79)
    a.label("K2A_loop")
    for nn in range(16):
        n = nn & 7
        qi, kt = n & 3, n >> 2
        qn, ktn = (n + 1) & 3, ((n + 1) >> 2) & 1
        qp, ktp = (n - 1) & 3, ((n - 1) >> 2) & 1
        Sc, Sn, Pc, Pp = S[n & 1], S[(n + 1) & 1], P[n & 1], P[(n + 1) & 1]
        mf = [f"v_mfma_f32_32x32x16_bf16 {v(O[qp],16)}, {v(VF[ktp],4)}, {v(Pp,4)}, {v(O[qp],16)}",
              f"v_mfma_f32_32x32x16_bf16 {v(Sn,16)}, {v(KM[ktn],4)}, {v(QM[qn],4)}, 0",
              f"v_mfma_f32_32x32x8_bf16 {v(Sn,16)}, {v(KRm[ktn],2)}, {v(QR[qn],2)}, {v(Sn,16)}",
              f"v_mfma_f32_32x32x16_bf16 {v(O[qp],16)}, {v(VF[ktp]+4,4)}, {v(Pp+4,4)}, {v(O[qp],16)}"]
        e = [f"v_exp_f32 v{Sc+i}, v{Sc+i}" for i in range(16)]
        c = [f"v_cvt_pk_bf16_f32 v{Pc+i}, v{Sc+2*i}, v{Sc+2*i+1}" for i in range(8)]
        rd = {4: rdK(0), 5: rdV(0)[:2], 6: rdV(0)[2:], 7: rdK(1), 1: rdV(1)[:2], 2: rdV(1)[2:]}.get(n, [])
        post = {g: [] for g in range(4)}
        if n in (3, 7): post[0].append("s_waitcnt lgkmcnt(0)")
        if n == 3:
            post[1] += ["s_add_u32 s49, s49, 1"]
            post[2] += ["s_cmp_eq_u32 s49, 3"]
            post[3] += [f"s_movk_i32 s53, {SLOT}", f"s_cmovk_i32 s53, {(-2*SLOT) & 0xffff}", "s_cmov_b32 s49, 0"]
        if n == 4:
            post[0].append("BARTRACE")
            post[1].append(rd[0]); post[2].append(rd[1])
        elif n == 7:
            post[1].append(rd[0]); post[2].append(rd[1])
            if nn == 15: post[3] += ["s_add_u32 s48, s48, 1", "s_cmp_lt_u32 s48, 8"]
        elif rd:
            post[0].append(rd[0]); post[1].append(rd[1])
        for g in range(4):
            a(mf[g])
            for ins in post[g]:
                if ins == "BARTRACE":
                    trace(a, 250, 79); a("s_barrier"); trace(a, 250, 79)
                else: a(ins)
            for ins in e[4*g:4*g+4]: a(ins)
            if g == 0 and nn in (8, 10) and not os.environ.get("K2_NOCHECK"):
                qa, qb_ = (n + 1) & 3, (n + 2) & 3
                a(f"v_max_f32 v5, v{O[qa]+8}, v{O[qb_]+8}")
                a("v_cmp_lt_f32 vcc, s52, v5")
                a("s_cmp_lg_u32 vcc_hi, 0")
                a(f"s_cbranch_scc1 K2A_rs{n}")
                a.label(f"K2A_rs{n}_ret")
                rescale.append((n, qa, qb_))
            if g == 0 and n == 4:
                for r_ in (KA, KR, VA, VA + 1): a(f"v_add_u32 v{r_}, s53, v{r_}")
            if g > 0:
                for ins in c[2*(g-1):2*(g-1)+2]: a(ins)
        for ins in c[6:8]: a(ins)
    a("s_cbranch_scc1 K2A_loop")
    a("s_nop 1")
    a(f"v_mfma_f32_32x32x16_bf16 {v(O[3],16)}, {v(VF[1],4)}, {v(P[1],4)}, {v(O[3],16)}")
    a(f"v_mfma_f32_32x32x16_bf16 {v(O[3],16)}, {v(VF[1]+4,4)}, {v(P[1]+4,4)}, {v(O[3],16)}")
    prof_mark(a, 2)
    SCR = 7168
    a(f"s_mul_i32 s15, s12, {SCR}")
    a("v_lshl_add_u32 v5, v2, 4, s15")
    a("v_lshl_add_u32 v6, v2, 2, s15")
    a("s_xor_b32 s15, s12, 2")
    a(f"s_mul_i32 s15, s15, {SCR}")
    a("v_lshl_add_u32 v7, v2, 4, s15")
    a("v_lshl_add_u32 v8, v2, 2, s15")
    a("s_waitcnt lgkmcnt(0)")
    for qd in range(3):
        a(f"ds_write_b128 v5, {v(O[2]+4*qd,4)} offset:{1024*qd}")
    a(f"ds_write_b32 v6, v{M+2} offset:6144")
    a(f"ds_write_b32 v6, v{M+3} offset:6400")
    for qd in range(3):
        a(f"ds_write_b128 v5, {v(O[3]+4*qd,4)} offset:{3072+1024*qd}")
    a("v_lshrrev_b32 v9, 4, v3")
    a(f"s_mov_b32 s15, {ACT_T16}")
    a("v_mul_lo_u32 v9, v9, s15")
    a("v_and_b32 v10, 15, v3")
    a("v_lshl_add_u32 v10, v10, 4, v9")
    a("v_lshl_add_u32 v9, v4, 8, v10")
    a("s_lshl_b32 s40, s38, 2")
    a("s_mul_i32 s40, s40, 44")
    a("s_lshr_b32 s15, s13, 1")
    a("s_add_u32 s41, s40, s15")
    a("s_lshl_b32 s41, s41, 10")
    a("s_lshl_b32 s15, s32, 9")
    a("s_add_u32 s41, s41, s15")
    a(f"s_add_u32 s41, s41, {WS_ACT}")
    a("s_lshr_b32 s15, s13, 3")
    a("s_add_u32 s42, s40, s15")
    a("s_lshl_b32 s42, s42, 10")
    a("s_bfe_u32 s15, s13, 0x20001")
    a("s_lshl_b32 s15, s15, 8")
    a("s_add_u32 s42, s42, s15")
    a("s_lshl_b32 s15, s32, 3")
    a("s_add_u32 s42, s42, s15")
    a(f"s_add_u32 s42, s42, {WS_ACT + 16*1024}")
    a("s_lshl_b32 s15, s12, 2")
    a(f"s_add_u32 s15, s15, {FLAGS}")
    a("v_mov_b32 v5, s15")
    a("v_xor_b32 v6, 8, v5")
    a("v_mov_b32 v11, 1")
    a("s_waitcnt lgkmcnt(0)")
    a("ds_write_b32 v5, v11")
    a.label("K2A_poll")
    a("ds_read_b32 v11, v6")
    a("s_waitcnt lgkmcnt(0)")
    a("v_cmp_eq_u32 vcc, 0, v11")
    a("s_cbranch_vccnz K2A_poll")
    for i in range(2):
        a(f"ds_read_b32 v{X+24+i}, v8 offset:{6144+256*i}")
        for qd in range(3):
            a(f"ds_read_b128 {v(X+12*i+4*qd,4)}, v7 offset:{3072*i+1024*qd}")
    for i in range(2):
        a(f"s_waitcnt lgkmcnt({4*(1-i)})")
        mb = X + 24 + i
        a(f"v_max_f32 v5, v{M+i}, v{mb}")
        a(f"v_sub_f32 v6, v{M+i}, v5")
        a(f"v_sub_f32 v7, v{mb}, v5")
        a("v_cvt_i32_f32 v6, v6")
        a("v_cvt_i32_f32 v7, v7")
        for j in range(12):
            a(f"v_ldexp_f32 v{O[i]+j}, v{O[i]+j}, v6")
            a(f"v_ldexp_f32 v{X+12*i+j}, v{X+12*i+j}, v7")
        for j in range(12):
            a(f"v_add_f32 v{O[i]+j}, v{O[i]+j}, v{X+12*i+j}")
        a(f"v_mov_b32 v5, v{O[i]+8}")
        a(f"v_mov_b32 v6, v{O[i]+8}")
        a("s_nop 1")
        a("v_permlane32_swap_b32 v5, v6")
        a("v_rcp_f32 v6, v6")
        a("s_nop 0")
        for j in range(12):
            a(f"v_mul_f32 v{O[i]+j}, v{O[i]+j}, v6")
        for j in range(6):
            a(f"v_cvt_pk_bf16_f32 v{S[i]+j}, v{O[i]+2*j}, v{O[i]+2*j+1}")
        a(f"buffer_store_dwordx4 {v(S[i],4)}, v9, s[24:27], s41 offen")
        a("s_mov_b32 exec_hi, 0")
        a(f"buffer_store_dwordx2 {v(S[i]+4,2)}, v10, s[24:27], s42 offen")
        a("s_mov_b32 exec_hi, -1")
        if i == 0:
            a(f"s_add_u32 s41, s41, {2*ACT_T16}")
            a(f"s_add_u32 s42, s42, {2*ACT_T16}")
    prof_mark(a, 3)
    trace_dump(a, 250, kidx, 24)
    prof_end(a, kidx, 24)
    for (n, qa, qb_) in rescale:
        a.label(f"K2A_rs{n}")
        for q in (qa, qb_):
            a(f"v_mov_b32 v5, v{O[q]+8}")
            a(f"v_mov_b32 v6, v{O[q]+8}")
            a("s_nop 1")
            a("v_permlane32_swap_b32 v5, v6")
            a("v_frexp_exp_i32_f32 v7, v6")
            a("v_cvt_f32_i32 v7, v7")
            a(f"v_add_f32 v7, {fhex(BIAS)}, v7")
            a("v_cmp_lt_f32 vcc, s52, v6")
            a(f"v_mov_b32 v8, v{M+q}")
            a("s_nop 0")
            a("v_cndmask_b32 v7, 0, v7, vcc")
            a(f"v_add_f32 v7, v7, v8")
            set_m(q, 7)
            a(f"v_sub_f32 v8, v8, v{M+q}")
            a("v_cvt_i32_f32 v8, v8")
            for j in range(16):
                a(f"v_ldexp_f32 v{O[q]+j}, v{O[q]+j}, v8")
        a("s_nop 1")
        a(f"s_branch K2A_rs{n}_ret")

def gen_G(a, kidx):
    ZS = 24576
    GS = 40960
    R = Regs(12, 256)
    VL = R.alloc("vl")
    VW = R.alloc("vw", 4)
    BA = R.alloc("ba", 4)
    AA = R.alloc("aa", 6)
    Z1 = R.alloc("z1", 12, 4)
    BS = R.alloc("bs", 2)
    BF = [[R.alloc(f"bf{ks}{t}", 4, 4) for t in range(2)] for ks in range(4)]
    AF = [[R.alloc(f"af{ks}{t}", 4, 4) for t in range(3)] for ks in range(4)]
    ACC = R.alloc("acc", 24, 4)
    WT = R.alloc("wt", 8, 4)
    def acc(tt, ft): return ACC + (tt * 3 + ft) * 4
    a("s_sub_u32 s12, s12, 4")
    if os.environ.get("K2_GPRIO"): a("s_setprio " + os.environ["K2_GPRIO"])
    trace_init(a, 250, 79)
    a(f"v_lshlrev_b32 v{VL}, 4, v2")
    a("s_and_b32 s15, s12, 1")
    a("s_add_u32 s35, s15, 1")
    a("s_mul_i32 s35, s35, 80")
    a("s_lshr_b32 s36, s12, 1")
    a("s_lshl_b32 s37, s36, 4")
    a("s_add_u32 s38, s34, s35")
    a("s_lshl_b32 s38, s38, 5")
    a("s_add_u32 s38, s38, s37")
    a("s_lshl_b32 s38, s38, 10")
    a(f"s_add_u32 s39, s38, {32768-1024}")
    a("s_add_u32 s40, s33, s35")
    a("s_lshl_b32 s40, s40, 5")
    a("s_add_u32 s40, s40, s37")
    a("s_lshl_b32 s40, s40, 10")
    a("s_sub_u32 s40, s40, 2048")
    a("s_mul_i32 s41, s12, 3072")
    a("s_mov_b32 s42, 0")
    def kv_ops():
        return ["s_mov_b32 m0, s41\ns_add_u32 s42, s42, 1\n" + f"buffer_load_dwordx4 v{VL}, s[24:27], s38 offen lds",
                f"buffer_load_dwordx4 v{VL}, s[24:27], s39 offen offset:1024 lds\ns_add_u32 s38, s38, 1024\ns_add_u32 s39, s39, 1024",
                f"buffer_load_dwordx4 v{VL}, s[24:27], s40 offen offset:2048 lds\ns_add_u32 s40, s40, 1024\ns_cmp_eq_u32 s42, 3\n"
                f"s_movk_i32 s15, {SLOT}\ns_cmovk_i32 s15, {(-2*SLOT) & 0xffff}\ns_cmov_b32 s42, 0\ns_add_u32 s41, s41, s15"]
    def issue_kv():
        for o in kv_ops(): a(o)
    for _ in range(2): issue_kv()
    srd(a, 16, 44, 45, 2048 * 2048 * 2)
    srd(a, 20, 46, 47, 4096)
    a("s_and_b32 s48, s2, 3")
    a("s_lshl_b32 s48, s48, 3")
    a("s_add_u32 s48, s48, s14")
    a("s_bfe_u32 s49, s2, 0x10002")
    a("s_lshl_b32 s49, s49, 2")
    a("s_lshr_b32 s15, s2, 6")
    a("s_add_u32 s49, s49, s15")
    a("s_mul_i32 s50, s12, 24")
    a("s_mul_i32 s15, s49, 3")
    a("s_add_u32 s50, s50, s15")
    a("s_lshl_b32 s50, s50, 11")
    a(f"s_add_u32 s50, s50, {WS_Z2N}")
    a("s_lshl_b32 s51, s48, 18")
    a("s_lshl_b32 s15, s12, 16")
    a("s_add_u32 s51, s51, s15")
    a("v_lshrrev_b32 v5, 4, v2")
    a("v_and_b32 v6, 15, v2")
    for i in range(4):
        a(f"v_add_u32 v7, {4*i}, v5")
        a("v_xor_b32 v8, v7, v6")
        a("v_lshlrev_b32 v7, 12, v7")
        a("v_lshl_add_u32 v7, v8, 4, v7")
        a(f"v_subrev_u32 v{VW+i}, {1024*i}, v7")
    a("s_mul_i32 s53, s12, 6144")
    a(f"s_add_u32 s53, s53, {GR0}")
    a("s_lshl_b32 s52, s12, 12")
    a(f"s_add_u32 s52, s52, {GR0 + ZS}")
    a("s_mov_b32 s54, 0")
    a(f"s_mov_b32 s77, {GS}")
    a(f"s_mov_b32 s78, {(-2*GS) & 0xffffffff}")
    def g_ops():
        o = []
        o.append("s_mov_b32 m0, s53\ns_add_u32 s55, s50, 4096\n" + f"buffer_load_dwordx4 v{VL}, s[24:27], s50 offen lds")
        for i in range(1, 4):
            o.append(f"buffer_load_dwordx4 v{VL}, s[24:27], s50 offen offset:{1024*i} lds")
        o.append(f"s_add_u32 m0, s53, 4096\ns_add_u32 s50, s50, {4*24*2048}\n" + f"buffer_load_dwordx4 v{VL}, s[24:27], s55 offen lds")
        o.append(f"buffer_load_dwordx4 v{VL}, s[24:27], s55 offen offset:1024 lds")
        o.append("s_mov_b32 m0, s52\ns_add_u32 s54, s54, 1\n" + f"buffer_load_dwordx4 v{VW}, s[16:19], s51 offen lds")
        for i in range(1, 4):
            o.append(f"buffer_load_dwordx4 v{VW+i}, s[16:19], s51 offen offset:{1024*i} lds")
        o[-1] += "\ns_add_u32 s51, s51, 256\ns_cmp_eq_u32 s54, 3\ns_cselect_b32 s15, s78, s77\ns_cmov_b32 s54, 0\ns_add_u32 s53, s53, s15\ns_add_u32 s52, s52, s15"
        return o
    def issue_g():
        for o in g_ops(): a(o)
    issue_g()
    a("s_and_b32 s56, s12, 1")
    a("s_lshr_b32 s57, s12, 1")
    a("v_xor_b32 v7, v5, v6")
    a("v_lshlrev_b32 v7, 4, v7")
    a("v_lshl_add_u32 v7, v6, 8, v7")
    a("s_lshl_b32 s15, s56, 13")
    a(f"s_add_u32 s15, s15, {GR0 + ZS}")
    a(f"v_add_u32 v{BA}, s15, v7")
    for ks in range(1, 4): a(f"v_xor_b32 v{BA+ks}, {64*ks}, v{BA}")
    a("v_bfe_u32 v7, v2, 2, 2")
    a("v_lshl_add_u32 v7, v5, 3, v7")
    a("v_and_b32 v8, 1, v2")
    a("v_bfe_u32 v9, v2, 1, 1")
    for ft in range(3):
        a(f"s_mul_i32 s15, s57, 3")
        a(f"s_add_u32 s15, s15, {ft}")
        a(f"s_and_b32 s58, s15, 1")
        a(f"s_lshl_b32 s58, s58, 1")
        a(f"s_lshr_b32 s15, s15, 1")
        a(f"s_lshl_b32 s15, s15, 11")
        a(f"s_add_u32 s15, s15, {GR0}")
        a("v_or_b32 v10, s58, v8")
        a("v_lshlrev_b32 v11, 2, v10")
        a("v_xor_b32 v11, v11, v7")
        a("v_lshlrev_b32 v11, 4, v11")
        a("v_lshl_add_u32 v11, v10, 9, v11")
        a("v_lshl_add_u32 v11, v9, 3, v11")
        a(f"v_add_u32 v{AA+2*ft}, s15, v11")
        a(f"v_xor_b32 v{AA+2*ft+1}, 64, v{AA+2*ft}")
    for i in range(24): a(f"v_mov_b32 v{ACC+i}, 0")
    a("s_mov_b32 s74, 0")
    a("s_mov_b32 s76, 0")
    a("s_waitcnt vmcnt(13)")
    a("s_barrier")
    issue_kv()
    issue_g()
    def reads(ks):
        r = [f"ds_read_b128 {v(BF[ks][0],4)}, v{BA+ks}"]
        for ft in range(3):
            for e in range(2):
                r.append(f"ds_read_b64_tr_b16 {v(AF[ks][ft]+2*e,2)}, v{AA+2*ft+e} offset:{6144*ks}")
            if ft == 0: r.append(f"ds_read_b128 {v(BF[ks][1],4)}, v{BA+ks} offset:4096")
        return r
    def stage(dma):
        for ins in reads(0) + reads(1)[:7]: a(ins)
        pend = reads(1)[7:] + reads(2) + reads(3)
        dma = list(dma)
        issued = 15
        for ks in range(4):
            need = 8 * (ks + 1)
            while issued < need:
                a(pend.pop(0)); issued += 1
            a(f"s_waitcnt lgkmcnt({issued - need})")
            for ft in range(3):
                for tt in range(2):
                    if not os.environ.get("K2_NOGMFMA"):
                        a(f"v_mfma_f32_16x16x32_bf16 {v(acc(tt,ft),4)}, {v(AF[ks][ft],4)}, {v(BF[ks][tt],4)}, {v(acc(tt,ft),4)}")
                    for _ in range(2):
                        if pend and issued - need < 14:
                            a(pend.pop(0)); issued += 1
                    if dma and (ks > 0 or not pend): a(dma.pop(0))
        for o in dma: a(o)
        a("s_add_u32 s76, s76, 1")
        a("s_cmp_eq_u32 s76, 3")
        a("s_cselect_b32 s15, s78, s77")
        a("s_cmov_b32 s76, 0")
        for r_ in list(range(BA, BA+4)) + list(range(AA, AA+6)): a(f"v_add_u32 v{r_}, s15, v{r_}")
    a.label("K2G_stage")
    a("s_waitcnt vmcnt(13)")
    trace(a, 250, 79)
    a("s_barrier")
    trace(a, 250, 79)
    stage(kv_ops() + g_ops())
    a("s_add_u32 s74, s74, 1")
    a("s_cmp_lt_u32 s74, 14")
    a("s_cbranch_scc1 K2G_stage")
    prof_mark(a, 0)
    a("s_waitcnt vmcnt(13)")
    a.label("K2G_tail")
    a("s_barrier")
    stage([])
    a("s_add_u32 s74, s74, 1")
    a("s_cmp_eq_u32 s74, 16")
    a("s_cbranch_scc1 K2G_fin")
    a("v_and_b32 v8, 1, v5")
    a("v_lshrrev_b32 v9, 1, v5")
    a("s_lshl_b32 s60, s48, 1")
    a("s_add_u32 s60, s60, s56")
    for ft in range(3):
        a(f"s_mul_i32 s15, s57, 3")
        a(f"s_add_u32 s15, s15, {ft}")
        a(f"s_and_b32 s58, s15, 1")
        a(f"s_lshl_b32 s58, s58, 1")
        a(f"s_lshr_b32 s15, s15, 1")
        a(f"s_mul_i32 s59, s49, 3")
        a(f"s_add_u32 s15, s15, s59")
        a(f"s_mul_i32 s59, s60, 24")
        a(f"s_add_u32 s15, s15, s59")
        a(f"s_lshl_b32 s15, s15, 11")
        a(f"s_add_u32 s59, s15, {WS_Z1}")
        a("v_or_b32 v10, s58, v8")
        a("v_lshlrev_b32 v11, 2, v10")
        a("v_xor_b32 v11, v11, v6")
        a("v_lshlrev_b32 v11, 4, v11")
        a("v_lshl_add_u32 v11, v10, 9, v11")
        a("v_lshl_add_u32 v11, v9, 3, v11")
        for tt in range(2):
            a(f"buffer_load_dwordx2 {v(Z1+(tt*3+ft)*2,2)}, v11, s[24:27], s59 offen offset:{256*tt}")
    a("v_lshlrev_b32 v10, 1, v6")
    a("s_lshl_b32 s59, s60, 6")
    for tt in range(2):
        a(f"buffer_load_ushort v{BS+tt}, v10, s[20:23], s59 offen offset:{32*tt}")
    a("s_lshl_b32 s64, s2, 2")
    a("s_add_u32 s64, s64, s12")
    a("s_min_u32 s64, s64, 879")
    a("s_mul_hi_u32 s65, s64, 0xCCCCCCD")
    a("s_mul_i32 s15, s65, 20")
    a("s_sub_u32 s66, s64, s15")
    a("s_mul_i32 s67, s65, 40")
    a("s_mov_b32 s68, 24"); a("s_mov_b32 s69, 4"); a("s_mov_b32 s70, 8")
    a("s_mul_i32 s15, s65, 160")
    a("s_sub_u32 s15, s15, %d" % (160*16 - 16))
    a("s_cmp_ge_u32 s65, 16")
    a("s_cmov_b32 s67, s15"); a("s_cmovk_i32 s68, 80"); a("s_cmov_b32 s69, 40"); a("s_cmov_b32 s70, 4")
    a("s_lshl_b32 s15, s65, 5")
    a("s_sub_u32 s15, s15, 640")
    a("s_cmp_ge_u32 s65, 20")
    a("s_cmov_b32 s67, s15"); a("s_cmov_b32 s68, 8"); a("s_cmov_b32 s69, 4"); a("s_cmov_b32 s70, 16")
    a("s_cselect_b32 s28, s8, s4")
    a("s_cselect_b32 s29, s9, s5")
    sel(a, 30, 768*1280, 640*1280)
    a("s_and_b32 s29, s29, 0xffff")
    a("s_mov_b32 s31, 0x00020000")
    a("v_bfe_u32 v8, v2, 2, 2")
    a("v_bfe_u32 v9, v2, 4, 1")
    a("v_mul_lo_u32 v9, v9, s70")
    a("v_add_u32 v8, v8, v9")
    a("v_mul_lo_u32 v9, v4, s69")
    a("v_add3_u32 v8, v8, v9, s67")
    a("s_movk_i32 s15, 1280")
    a("v_mul_lo_u32 v8, v8, s15")
    a("v_and_b32 v9, 3, v2")
    a("v_lshl_add_u32 v8, v9, 4, v8")
    a("s_lshl_b32 s71, s66, 6")
    a("s_mul_i32 s15, s68, 1280")
    a("s_add_u32 s72, s71, s15")
    a("s_sub_u32 s72, s72, 1024")
    a("s_lshl_b32 s73, s12, 11")
    a(f"s_add_u32 s73, s73, {GR0 + GS}")
    a("s_mov_b32 m0, s73")
    a("s_nop 0")
    a("buffer_load_dwordx4 v8, s[28:31], s71 offen lds")
    a("buffer_load_dwordx4 v8, s[28:31], s72 offen offset:1024 lds")
    a("s_waitcnt vmcnt(10)")
    a("s_branch K2G_tail")
    a.label("K2G_fin")
    prof_mark(a, 1)
    P = BF[0][0]
    a("s_waitcnt vmcnt(2)")
    for tt in range(2):
        a(f"v_lshlrev_b32 v{BS+tt}, 16, v{BS+tt}")
    a("s_nop 4")
    for tt in range(2):
        for ft in range(3):
            A = acc(tt, ft); Z = Z1 + (tt*3+ft)*2
            for j in range(4): a(f"v_add_f32 v{A+j}, v{A+j}, v{BS+tt}")
            for j in range(2):
                a(f"v_lshlrev_b32 v8, 16, v{Z+j}")
                a(f"v_and_b32 v9, 0xffff0000, v{Z+j}")
                a(f"v_mul_f32 v{A+2*j}, v{A+2*j}, v8")
                a(f"v_mul_f32 v{A+2*j+1}, v{A+2*j+1}, v9")
                a(f"v_cvt_pk_bf16_f32 v{P+(tt*3+ft)*2+j}, v{A+2*j}, v{A+2*j+1}")
    a("s_mul_i32 s61, s49, 6")
    a("s_mul_i32 s15, s57, 3")
    a("s_add_u32 s61, s61, s15")
    a("s_mul_i32 s62, s60, 88")
    for ft in range(3):
        a(f"s_add_u32 s15, s61, {ft}")
        a("s_and_b32 s58, s15, 1")
        a("s_lshl_b32 s58, s58, 3")
        a("s_lshr_b32 s15, s15, 1")
        a("s_add_u32 s15, s15, s62")
        a("s_lshl_b32 s15, s15, 10")
        a("s_add_u32 s15, s15, s58")
        a(f"s_add_u32 s59, s15, {WS_ACT + 20*1024}")
        a(f"buffer_store_dwordx2 {v(P+ft*2,2)}, v{VL}, s[24:27], s59 offen")
        a(f"s_add_u32 s59, s59, {ACT_T16}")
        a(f"buffer_store_dwordx2 {v(P+(3+ft)*2,2)}, v{VL}, s[24:27], s59 offen")
    a("s_waitcnt vmcnt(6)")
    a("v_lshlrev_b32 v8, 6, v7")
    a("v_and_b32 v9, 3, v2")
    a("v_lshl_add_u32 v8, v9, 3, v8")
    a("v_add_u32 v8, s73, v8")
    for nn in range(2):
        for e in range(2):
            a(f"ds_read_b64_tr_b16 {v(WT+4*nn+2*e,2)}, v8 offset:{256*e+32*nn}")
    a("s_lshl_b32 s15, s66, 1")
    a("s_mul_i32 s15, s15, 44")
    a("s_add_u32 s15, s15, s65")
    a("s_lshl_b32 s15, s15, 10")
    a(f"s_add_u32 s71, s15, {WS_WF}")
    a(f"s_add_u32 s72, s71, {44*1024}")
    a("s_waitcnt lgkmcnt(0)")
    a(f"buffer_store_dwordx4 {v(WT,4)}, v{VL}, s[24:27], s71 offen")
    a(f"buffer_store_dwordx4 {v(WT+4,4)}, v{VL}, s[24:27], s72 offen")
    trace_dump(a, 250, kidx, 24)
    prof_end(a, kidx, 24)
```

```python
import sys, os
sys.path.insert(0, os.path.dirname(os.path.abspath(__file__)))
from asmlib import *
from layout import *
import k1
NAME = "parallel_sum__softmax_full_mha__mixer_gmlp__prompt"
def build(out, which=("k1", "kn", "k2", "k3")):
    ref = open(f"cdna_kernels/{NAME}.s.ref").read().split("\n")
    hdr = [l for l in ref if l.startswith(";") and "@launch" not in l and "Override" not in l and "grid=ceil" not in l]
    a = Asm()
    descs = []
    launches = []
    if "k1" in which:
        n = k1.gen_k1(a); descs.append(descriptor("k1_kernel", 256, 100)); launches.append(f"; @launch kernel=k1_kernel grid=(256,1,1) block=(512,1,1) lds={k1.K1_LDS}")
    if "kn" in which:
        import kn
        kn.gen_kn(a); descs.append(descriptor("kn_kernel", 64, 100)); launches.append(f"; @launch kernel=kn_kernel grid=(384,1,1) block=(256,1,1) lds=0")
    if "k2" in which:
        import k2
        k2.gen_k2(a); descs.append(descriptor("k2_kernel", 256, 100)); launches.append(f"; @launch kernel=k2_kernel grid=(256,1,1) block=(512,1,1) lds={k2.K2_LDS}")
    if "k3" in which:
        import k3
        nv, acc = k3.gen_k3(a); descs.append(descriptor("k3_kernel", nv, 100, acc)); launches.append(f"; @launch kernel=k3_kernel grid=(256,1,1) block=(256,1,1) lds={k3.K3_LDS}")
    txt = "\n".join(hdr) + "\n" + "\n".join(launches) + "\n"
    txt += '.amdgcn_target "amdgcn-amd-amdhsa--gfx950"\n.text\n'
    txt += a.text()
    txt += '.section .rodata,"a"\n' + "".join(descs)
    open(out, "w").write(txt)
if __name__ == "__main__":
    out = sys.argv[1] if len(sys.argv) > 1 else f"cdna_kernels/{NAME}.s"
    which = sys.argv[2].split(",") if len(sys.argv) > 2 else ("k1", "kn", "k2", "k3")
    build(out, which)
```

```python
from asmlib import *
from layout import *
def gen_diag(a, A, B):
    kernel_begin(a, "dg_kernel")
    a("s_cmp_ge_u32 s2, 1")
    a("s_cbranch_scc1 DG_exit")
    a("s_load_dwordx2 s[10:11], s[0:1], 80")
    a("v_lshlrev_b32 v1, 8, v0")
    a("s_waitcnt lgkmcnt(0)")
    srd(a, 24, 10, 11, WS_SIZE)
    def ev(E, dst):
        kidx, which, nwg, nw = E
        op = "min" if which == "start" else "max"
        first = True
        for blk in range(nwg // 64):
            a(f"s_mov_b32 s15, {WS_PROF + kidx*0x20000 + blk*64*256 + (0 if which=='start' else 4)}")
            for w in range(nw):
                a(f"buffer_load_dword v{8+w}, v1, s[24:27], s15 offen offset:{32*w}")
            a("s_waitcnt vmcnt(0)")
            for w in range(nw):
                if first: a(f"v_mov_b32 v2, v{8+w}"); first = False
                else: a(f"v_{op}_u32 v2, v2, v{8+w}")
        a("s_nop 1")
        a(f"v_readlane_b32 s{dst}, v2, 0")
        for l in range(1, 64):
            a(f"v_readlane_b32 s15, v2, {l}")
            a(f"s_{op}_u32 s{dst}, s{dst}, s15")
    E0 = A or B
    ev(E0, 30); ev(B, 31)
    a("s_sub_u32 s32, s31, s30")
    if A is None: a("s_mov_b32 s32, 0")
    a("s_min_u32 s32, s32, 20000")
    a("s_memrealtime s[34:35]")
    a("s_waitcnt lgkmcnt(0)")
    a.label("DG_spin")
    a("s_memrealtime s[36:37]")
    a("s_waitcnt lgkmcnt(0)")
    a("s_sub_u32 s38, s36, s34")
    a("s_cmp_lt_u32 s38, s32")
    a("s_cbranch_scc1 DG_spin")
    a.label("DG_exit")
    a("s_endpgm")
```

```python
import sys, os
sys.path.insert(0, os.path.dirname(os.path.abspath(__file__)))
from asmlib import *
from layout import *
import k1
NAME = "parallel_sum__softmax_full_mha__mixer_gmlp__prompt"
def build(out, which=("k1", "kn", "k2", "k3")):
    ref = open(f"cdna_kernels/{NAME}.s.ref").read().split("\n")
    hdr = [l for l in ref if l.startswith(";") and "@launch" not in l and "Override" not in l and "grid=ceil" not in l]
    a = Asm()
    descs = []
    launches = []
    if "k1" in which:
        n = k1.gen_k1(a); descs.append(descriptor("k1_kernel", 256, 100)); launches.append(f"; @launch kernel=k1_kernel grid=(256,1,1) block=(512,1,1) lds={k1.K1_LDS}")
    if "kn" in which:
        import kn
        kn.gen_kn(a); descs.append(descriptor("kn_kernel", 64, 100)); launches.append(f"; @launch kernel=kn_kernel grid=(384,1,1) block=(256,1,1) lds=0")
    if "k2" in which:
        import k2
        k2.gen_k2(a); descs.append(descriptor("k2_kernel", 256, 100)); launches.append(f"; @launch kernel=k2_kernel grid=(256,1,1) block=(512,1,1) lds={k2.K2_LDS}")
    if "k3" in which:
        import k3
        nv, acc = k3.gen_k3(a); descs.append(descriptor("k3_kernel", nv, 100, acc)); launches.append(f"; @launch kernel=k3_kernel grid=(256,1,1) block=(256,1,1) lds={k3.K3_LDS}")
    dg = os.environ.get("DIAG")
    if dg:
        import kdiag
        geo = {0: (256, 8), 1: (384, 4), 2: (256, 8), 3: (256, 4)}
        def pe(t):
            if t == "none": return None
            k = int(t[0]); return (k, "start" if t[1] == "s" else "end") + geo[k]
        A, B = dg.split(",")
        kdiag.gen_diag(a, pe(A), pe(B)); descs.append(descriptor("dg_kernel", 32, 48)); launches.append("; @launch kernel=dg_kernel grid=(1,1,1) block=(64,1,1) lds=0")
    txt = "\n".join(hdr) + "\n" + "\n".join(launches) + "\n"
    txt += '.amdgcn_target "amdgcn-amd-amdhsa--gfx950"\n.text\n'
    txt += a.text()
    txt += '.section .rodata,"a"\n' + "".join(descs)
    open(out, "w").write(txt)
if __name__ == "__main__":
    out = sys.argv[1] if len(sys.argv) > 1 else f"cdna_kernels/{NAME}.s"
    which = sys.argv[2].split(",") if len(sys.argv) > 2 else ("k1", "kn", "k2", "k3")
    build(out, which)
```

```python
from asmlib import *
from layout import *
import math, os

XBUF = [0, 16384, 32768]
WBUF = [49152, 49152 + 32768, 49152 + 65536]
STAT = 147456
K1_LDS = STAT + 8192

STP = os.environ.get("K1_ST", "")
def gen_k1(a):
    kernel_begin(a, "k1_kernel")
    a("s_cmp_ge_u32 s2, 256")
    a("s_cbranch_scc1 K1_exit")
    prof_begin(a)
    a("s_load_dwordx4 s[4:7], s[0:1], 0")
    a("s_load_dwordx2 s[8:9], s[0:1], 32")
    a("s_load_dwordx2 s[10:11], s[0:1], 80")
    a("v_lshrrev_b32 v1, 6, v0")
    a("v_and_b32 v2, 63, v0")
    a("v_readfirstlane_b32 s12, v1")
    a("s_and_b32 s15, s2, 1")
    a("s_lshl_b32 s13, s15, 3")
    a("s_bfe_u32 s15, s2, 0x30003")
    a("s_add_u32 s13, s13, s15")
    a("s_bfe_u32 s14, s2, 0x20001")
    a("s_lshl_b32 s14, s14, 2")
    a("s_lshr_b32 s15, s2, 6")
    a("s_add_u32 s14, s14, s15")
    a("s_waitcnt lgkmcnt(0)")
    prof_mark(a, 3)
    srd(a, 16, 4, 5, 2048 * 640 * 2)
    srd(a, 24, 10, 11, WS_SIZE)
    a("s_cmp_lt_u32 s14, 8")
    a("s_cselect_b32 s20, s6, s8")
    a("s_cselect_b32 s21, s7, s9")
    a("s_and_b32 s21, s21, 0xffff")
    a("s_cmp_lt_u32 s14, 8")
    sel(a, 22, 640*1920*2, 640*1536*2)
    a("s_mov_b32 s23, 0x00020000")
    sel(a, 28, 3840, 3072)
    a("s_mul_i32 s29, s14, 480")
    a("s_and_b32 s30, s29, 63")
    a("s_and_b32 s29, s29, 0xffffffc0")
    a("s_sub_u32 s15, s14, 8")
    a("s_mul_i32 s15, s15, 384")
    a("s_cmp_lt_u32 s14, 8")
    a("s_cselect_b32 s29, s29, s15")
    a("s_cselect_b32 s30, s30, 0")
    a("s_cmp_ge_u32 s12, 4")
    a("s_cbranch_scc0 K1_compute")
    a("s_sub_u32 s12, s12, 4")
    a("s_lshl_b32 s15, s2, 2")
    a("s_add_u32 s15, s15, s12")
    a("s_lshl_b32 s15, s15, 2")
    a(f"s_add_u32 s15, s15, {WS_CNT}")
    a("v_mov_b32 v3, 0")
    a("s_mov_b64 exec, 1")
    a("buffer_store_dword v3, v3, s[24:27], s15 offen")
    a("s_mov_b64 exec, -1")
    VX, VW = 4, 8
    a("v_lshrrev_b32 v3, 3, v2")
    a("v_lshrrev_b32 v12, 4, v2")
    a("v_and_b32 v13, 7, v2")
    a("v_lshrrev_b32 v14, 5, v2")
    a("v_and_b32 v15, 31, v2")
    a("s_movk_i32 s15, 1280")
    for jj in range(4):
        a(f"v_add_u32 v16, {8*jj}, v3")
        a(f"v_mul_lo_u32 v16, v16, s15")
        a(f"v_add_u32 v17, {4*jj}, v12")
        a(f"v_and_b32 v17, 7, v17")
        a(f"v_xor_b32 v17, v17, v13")
        a(f"v_lshl_add_u32 v16, v17, 4, v16")
        a(f"v_subrev_u32 v{VX+jj}, {1024*jj}, v16")
        a(f"v_add_u32 v16, {2*jj}, v14")
        a(f"v_and_b32 v17, 3, v16")
        a(f"v_mul_lo_u32 v16, v16, s28")
        a(f"v_lshlrev_b32 v17, 2, v17")
        a(f"v_xor_b32 v17, v17, v15")
        a(f"v_lshl_add_u32 v16, v17, 4, v16")
        a(f"v_subrev_u32 v{VW+jj}, {1024*jj}, v16")
    a("s_lshl_b32 s31, s13, 7")
    a("s_lshl_b32 s15, s12, 5")
    a("s_add_u32 s31, s31, s15")
    a("s_mul_i32 s31, s31, 1280")
    a("s_lshl_b32 s15, s12, 4")
    a("s_mul_i32 s32, s15, s28")
    a("s_add_u32 s32, s32, s29")
    a("s_lshl_b32 s33, s28, 3")
    a("s_lshl_b32 s34, s28, 6")
    a("s_lshl_b32 s35, s12, 12")
    a("s_lshl_b32 s36, s12, 13")
    a(f"s_add_u32 s36, s36, {WBUF[0]}")
    a("s_mov_b32 s37, 0")
    def issue_ops():
        if os.environ.get("K1_NODMA"): return []
        o = []
        for jj in range(4):
            o.append(("s_mov_b32 m0, s35\ns_add_u32 s38, s32, s33\n" if jj == 0 else "") + f"buffer_load_dwordx4 v{VX+jj}, s[16:19], s31 offen offset:{1024*jj} lds")
        for jj in range(4):
            o.append(("s_mov_b32 m0, s36\ns_add_u32 s31, s31, 128\n" if jj == 0 else "") + f"buffer_load_dwordx4 v{VW+jj}, s[20:23], s32 offen offset:{1024*jj} lds")
        for jj in range(4):
            o.append(("s_add_u32 m0, s36, 4096\ns_add_u32 s32, s32, s34\n" if jj == 0 else "") + f"buffer_load_dwordx4 v{VW+jj}, s[20:23], s38 offen offset:{1024*jj} lds")
        o[-1] += "\ns_add_u32 s37, s37, 1\ns_cmp_eq_u32 s37, 3\ns_movk_i32 s39, 0x4000\ns_cmovk_i32 s39, 0x8000\ns_cmov_b32 s37, 0\ns_add_u32 s35, s35, s39\ns_lshl_b32 s39, s39, 1\ns_add_u32 s36, s36, s39"
        return o
    def issue():
        for o in issue_ops(): a(o)
    for i in range(16): a(f"v_mov_b32 v{32+i}, 0")
    a("v_lshl_add_u32 v20, v2, 4, s35")
    a("s_mov_b32 s41, 0")
    def xstats(dma):
        dma = list(dma)
        for jj in range(4):
            a(f"ds_read_b128 v[{48+4*jj}:{51+4*jj}], v20 offset:{1024*jj}")
        a("s_add_u32 s41, s41, 1")
        a("s_cmp_eq_u32 s41, 3")
        a("s_movk_i32 s42, 0x4000")
        a("s_cmovk_i32 s42, 0x8000")
        a("s_cmov_b32 s41, 0")
        a("v_add_u32 v20, s42, v20")
        for jj in range(4):
            if dma: a(dma.pop(0))
            a(f"s_waitcnt lgkmcnt({3-jj})")
            for i in range(4):
                a(f"v_lshlrev_b32 v{64+2*i}, 16, v{48+4*jj+i}")
                a(f"v_and_b32 v{65+2*i}, 0xffff0000, v{48+4*jj+i}")
            for i in range(4):
                if dma and i % 2 == 0: a(dma.pop(0))
                a(f"v_add_f32 v{32+4*jj}, v{32+4*jj}, v{64+2*i}")
                a(f"v_add_f32 v{33+4*jj}, v{33+4*jj}, v{65+2*i}")
                a(f"v_fmac_f32 v{34+4*jj}, v{64+2*i}, v{64+2*i}")
                a(f"v_fmac_f32 v{35+4*jj}, v{65+2*i}, v{65+2*i}")
        assert not dma
    issue()
    issue()
    prof_mark(a, 0)
    a("s_mov_b32 s40, 0")
    a.label("K1_ld_loop")
    a("s_waitcnt vmcnt(12)")
    a("s_barrier")
    xstats(issue_ops())
    a("s_add_u32 s40, s40, 1")
    a("s_cmp_lt_u32 s40, 8")
    a("s_cbranch_scc1 K1_ld_loop")
    a("s_waitcnt vmcnt(12)")
    a.label("K1_ld_tail")
    a("s_barrier")
    xstats([])
    a("s_add_u32 s40, s40, 1")
    a("s_waitcnt vmcnt(0)")
    a("s_cmp_lt_u32 s40, 10")
    a("s_cbranch_scc1 K1_ld_tail")
    code_touch(a, "k2_kernel", 12, 24, 25)
    for jj in range(4):
        a(f"v_add_f32 v{48+2*jj}, v{32+4*jj}, v{33+4*jj}")
        a(f"v_add_f32 v{49+2*jj}, v{34+4*jj}, v{35+4*jj}")
    for dpp in ("quad_perm:[1,0,3,2]", "quad_perm:[2,3,0,1]", "row_half_mirror"):
        a("s_nop 0")
        for i in range(8):
            a(f"v_add_f32_dpp v{48+i}, v{48+i}, v{48+i} {dpp} row_mask:0xf bank_mask:0xf")
    a("s_lshl_b32 s15, s12, 8")
    a(f"s_add_u32 s15, s15, {STAT}")
    a("v_lshl_add_u32 v21, v3, 3, s15")
    for jj in range(4):
        a(f"ds_write_b64 v21, v[{48+2*jj}:{49+2*jj}] offset:{64*jj}")
    a("s_waitcnt lgkmcnt(0)")
    a("s_barrier")
    prof_end(a, 0, 24)

    a.label("K1_compute")
    R = Regs(3, 256)
    T = [R.alloc(f"t{i}") for i in range(9)]
    XA = R.alloc("xa", 4)
    WE = R.alloc("we", 4)
    WO = R.alloc("wo", 4)
    SX = R.alloc("sx", 4, 4)
    CS = R.alloc("cs", 16, 4)
    SEL = R.alloc("sel", 4, 4)
    ONES = R.alloc("ones")
    XF = [[R.alloc(f"xf{b}{i}", 4, 4) for i in range(2)] for b in range(2)]
    WF = [[R.alloc(f"wf{b}{i}", 4, 4) for i in range(4)] for b in range(2)]
    ACC = R.alloc("acc", 128, 4)
    EX = R.alloc("ex", 28, 4)
    def acc(ai, t): return ACC + (ai * 4 + t) * 16
    code_touch(a, "K1_loop_q", 12, 3, 255)
    a("s_lshr_b32 s31, s12, 1")
    a("s_and_b32 s32, s12, 1")
    a("s_xor_b32 s33, s31, s32")
    a("v_and_b32 v3, 31, v2")
    a("v_lshrrev_b32 v4, 5, v2")
    a("v_bfe_u32 v5, v2, 1, 3")
    a("s_lshl_b32 s15, s31, 13")
    a("v_lshl_add_u32 v6, v3, 7, s15")
    a("v_xor_b32 v5, v5, v4")
    a("s_lshl_b32 s15, s33, 1")
    a("v_xor_b32 v5, s15, v5")
    for u in range(4):
        a(f"v_xor_b32 v7, {2*u}, v5")
        a(f"v_lshl_add_u32 v{XA+u}, v7, 4, v6")
    a("s_cmp_lt_u32 s14, 8")
    sel(a, 15, 240, 192)
    a("s_mul_i32 s15, s15, s32")
    a("s_add_u32 s15, s15, s30")
    a("v_bfe_u32 v5, v2, 2, 2")
    a("v_and_b32 v6, 3, v2")
    a("v_lshlrev_b32 v6, 3, v6")
    a("v_bfe_u32 v7, v2, 4, 1")
    a("v_lshl_add_u32 v6, v7, 5, v6")
    a("v_add_u32 v6, s15, v6")
    a("s_add_u32 s38, s15, 232")
    a("v_lshl_add_u32 v7, v4, 3, v5")
    a("v_lshlrev_b32 v7, 9, v7")
    a(f"v_add_u32 v7, {WBUF[0]}, v7")
    a("s_lshl_b32 s15, s33, 13")
    for t in range(4):
        a(f"v_add_u32 v8, {64*t}, v6")
        if t == 3: a("v_min_u32 v8, s38, v8")
        a("v_lshrrev_b32 v9, 6, v8")
        a("v_xor_b32 v9, v9, v5")
        a("v_and_b32 v8, 63, v8")
        a("v_lshl_add_u32 v8, v9, 6, v8")
        a("v_add_u32 v8, v8, v7")
        a(f"v_add_u32 v{WE+t}, s15, v8")
        a(f"v_subrev_u32 v{WO+t}, s15, v8")
    a(f"v_mov_b32 v{ONES}, 0x3f803f80")
    for i in range(16):
        a(f"v_mov_b32 v{CS+i}, 0")
    a("v_bfe_u32 v8, v2, 4, 1")
    a("v_and_b32 v9, 15, v2")
    a("v_cmp_eq_u32 vcc, v8, v9")
    a("s_nop 1")
    a(f"v_cndmask_b32 v{SEL}, 0, v{ONES}, vcc")
    for i in range(1, 4): a(f"v_mov_b32 v{SEL+i}, v{SEL}")
    for i in range(128):
        a(f"v_mov_b32 v{ACC+i}, 0")
    a("s_mov_b32 s34, 0")
    a("s_mov_b32 s35, 0")

    def reads(u, b, NT):
        W = WE if u % 2 == 0 else WO
        r = [f"ds_read_b128 {v(XF[b][0],4)}, v{XA+u}"]
        def wr(t):
            return [f"ds_read_b64_tr_b16 {v(WF[b][t],2)}, v{W+t} offset:{u*8192}",
                    f"ds_read_b64_tr_b16 {v(WF[b][t]+2,2)}, v{W+t} offset:{u*8192+2048}"]
        r += wr(0) + wr(1)
        r += [f"ds_read_b128 {v(XF[b][1],4)}, v{XA+u} offset:4096"]
        for t in range(2, NT): r += wr(t)
        return r

    def mainloop(NT, tag):
        a("s_barrier")
        prof_mark(a, 0)
        for ins in reads(0, 0, NT): a(ins)
        a.label(f"K1_loop_{tag}")
        a("s_add_u32 s35, s35, 1")
        a("s_cmp_eq_u32 s35, 3")
        a("s_movk_i32 s36, 0x4000")
        a("s_cmovk_i32 s36, 0x8000")
        a("s_cmov_b32 s35, 0")
        a("s_lshl_b32 s37, s36, 1")
        for u in range(4):
            b = u & 1
            order = [(0,0),(1,0),(0,1),(1,1)] + ([(2,0),(3,0),(2,1),(3,1)] if NT == 4 else [(2,0),(2,1)])
            rd = reads((u + 1) & 3, b ^ 1, NT)
            st = []
            if u % 2 == 0:
                st = [f"v_mfma_f32_16x16x32_bf16 {v(CS+4*t,4)}, {v(SEL,4)}, {v(WF[b][t],4)}, {v(CS+4*t,4)}" for t in range(NT)]
            if os.environ.get("K1_NOSTAT"): st = []
            if os.environ.get("K1_NORD"): rd = []
            if os.environ.get("K1_NOTR"): rd = [x for x in rd if "tr_b16" not in x]
            if os.environ.get("K1_NOB128"): rd = [x for x in rd if "b128" not in x]
            upd = []
            if u == 0: upd = [f"v_add_u32 v{XA+0}, s36, v{XA+0}", f"v_add_u32 v{XA+1}, s36, v{XA+1}"]
            if u == 1: upd = [f"v_add_u32 v{XA+2}, s36, v{XA+2}"] + [f"v_add_u32 v{WE+t}, s37, v{WE+t}" for t in range(NT)]
            if u == 2: upd = [f"v_add_u32 v{XA+3}, s36, v{XA+3}"] + [f"v_add_u32 v{WO+t}, s37, v{WO+t}" for t in range(NT)]
            a("s_waitcnt lgkmcnt(0)")
            n = len(order)
            first_rd_gap = 1 if u == 3 else 0
            rdi = 0; sti = 0
            per_st = (len(st) + n - 1) // n
            for mi, (t, ai) in enumerate(order):
                a(f"v_mfma_f32_32x32x16_bf16 {v(acc(ai,t),16)}, {v(WF[b][t],4)}, {v(XF[b][ai],4)}, {v(acc(ai,t),16)}")
                if u == 3 and mi == 0:
                    a("s_barrier")
                if mi >= first_rd_gap:
                    for _ in range(2):
                        if rdi < len(rd):
                            a(rd[rdi]); rdi += 1
                if mi % 2 == 1 and sti < len(st):
                    a(st[sti]); sti += 1
                if rdi >= len(rd) and upd and mi >= n - 2:
                    k = len(upd) if mi == n - 1 else (len(upd) + 1) // 2
                    for ins in upd[:k]: a(ins)
                    upd = upd[k:]
            assert rdi == len(rd) and sti == len(st) and not upd, (rdi, len(rd), sti, len(st), upd)
        a("s_add_u32 s34, s34, 1")
        a("s_cmp_lt_u32 s34, 10")
        a(f"s_cbranch_scc1 K1_loop_{tag}")

    RHO = [EX + 0, EX + 2]
    def stats_epilogue(NT):
        prof_mark(a, 1)
        CSA = STAT + 2048
        E = XF[0][0]
        a("s_lshl_b32 s15, s12, 9")
        a(f"s_add_u32 s15, s15, {CSA}")
        a("v_lshl_add_u32 v5, v2, 2, s15")
        a("v_and_b32 v3, 31, v2")
        a("v_lshl_add_u32 v6, v3, 2, s15")
        a("v_xor_b32 v7, 0x400, v6")
        a("s_lshl_b32 s15, s31, 9")
        a(f"s_add_u32 s15, s15, {STAT}")
        a("v_lshl_add_u32 v8, v3, 3, s15")
        a("s_waitcnt vmcnt(0) lgkmcnt(0)")
        a(f"ds_read_b64 {v(SX,2)}, v8")
        a(f"ds_read_b64 {v(SX+2,2)}, v8 offset:256")
        a("s_mov_b64 exec, 0xffff")
        for t in range(NT):
            a(f"ds_write2_b32 v5, v{CS+4*t}, v{CS+4*t+1} offset0:{32*t} offset1:{32*t+16}")
        a("s_mov_b64 exec, -1")
        a("s_waitcnt lgkmcnt(0)")
        a("s_barrier")
        for t in range(NT):
            a(f"ds_read_b32 v{E+12+t}, v6 offset:{128*t}")
            a(f"ds_read_b32 v{E+16+t}, v7 offset:{128*t}")
        BX = E + 24
        a("v_cmp_gt_u32 vcc, 32, v2")
        for ai in range(2):
            sx, sxx = SX + 2*ai, SX + 2*ai + 1
            a(f"v_mul_f32 v{sx}, {fhex(1.0/640)}, v{sx}")
            a(f"v_mul_f32 v{sxx}, {fhex(1.0/640)}, v{sxx}")
            a(f"v_fma_f32 v{sxx}, -v{sx}, v{sx}, v{sxx}")
            a(f"v_max_f32 v{sxx}, 0, v{sxx}")
            a(f"v_cvt_pk_bf16_f32 v{sxx}, v{sxx}, v{sxx}")
            a(f"v_and_b32 v{sxx}, 0xffff0000, v{sxx}")
            a(f"v_add_f32 v{sxx}, {fhex(1e-5)}, v{sxx}")
            a(f"v_cvt_pk_bf16_f32 v{sxx}, v{sxx}, v{sxx}")
            a(f"v_and_b32 v{sxx}, 0xffff0000, v{sxx}")
            a(f"v_sqrt_f32 v{sxx}, v{sxx}")
            a(f"v_cvt_pk_bf16_f32 v{sx}, -v{sx}, -v{sx}")
            a(f"v_cvt_pk_bf16_f32 v{sxx}, v{sxx}, v{sxx}")
            a(f"v_and_b32 v{sxx}, 0xffff0000, v{sxx}")
            a(f"v_rcp_f32 v{RHO[ai]}, v{sxx}")
            a(f"v_cndmask_b32 v{BX+2*ai}, 0, v{sx}, vcc")
            a(f"v_and_b32 v{BX+2*ai+1}, 0xffff, v{BX+2*ai}")
        a("s_waitcnt lgkmcnt(0)")
        AX = E + 28
        for t in range(NT):
            c = CS + t
            a(f"v_add_f32 v{c}, v{E+12+t}, v{E+16+t}")
            a(f"v_cvt_pk_bf16_f32 v3, v{c}, v{c}")
            a(f"v_and_b32 v3, 0xffff0000, v3")
            a(f"v_sub_f32 v3, v{c}, v3")
            a(f"v_cvt_pk_bf16_f32 v{AX+2*t}, v{c}, v3")
            a(f"v_and_b32 v4, 0xffff0000, v{AX+2*t}")
            a(f"v_sub_f32 v3, v3, v4")
            a(f"v_cvt_pk_bf16_f32 v{AX+2*t+1}, v3, 0")
        a("s_nop 1")
        for t in range(NT):
            for ai in range(2):
                a(f"v_mfma_f32_32x32x8_bf16 {v(acc(ai,t),16)}, {v(AX+2*t,2)}, {v(BX+2*ai,2)}, {v(acc(ai,t),16)}")

    a("s_cmp_lt_u32 s14, 8")
    a("s_cbranch_scc0 K1_z")
    mainloop(4, "q")
    stats_epilogue(4)
    a("v_lshlrev_b32 v5, 4, v2")
    a("v_xor_b32 v6, 64, v5")
    a("v_xor_b32 v7, 128, v5")
    a("s_mul_i32 s36, s14, 30")
    a("s_mul_i32 s15, s32, 15")
    a("s_add_u32 s36, s36, s15")
    a("s_lshl_b32 s37, s36, 5")
    a("s_lshl_b32 s15, s13, 1")
    a("s_add_u32 s15, s15, s31")
    a("s_add_u32 s37, s37, s15")
    a("s_lshl_b32 s37, s37, 10")
    RS = [EX + 4, EX + 6]
    ST = [EX + 8, EX + 12, EX + 16, EX + 20]
    for Q in range(15):
        t, q = Q // 4, Q % 4
        pp, U = Q // 5, Q % 5
        if U == 0:
            a(f"s_cmp_lt_u32 s36, {80 - 5*pp}")
            a(f"s_cselect_b32 s15, {fhex(QSCALE)}, 1.0")
            a(f"v_mul_f32 v{RS[0]}, s15, v{RHO[0]}")
            a(f"v_mul_f32 v{RS[1]}, s15, v{RHO[1]}")
            if Q == 0:
                a("s_nop 7")
        S = ST[Q % 4]
        for ai in range(2):
            A = acc(ai, t) + 4*q
            a(f"v_pk_mul_f32 {v(A,2)}, {v(A,2)}, {v(RS[ai],2)} op_sel_hi:[1,0]")
            a(f"v_pk_mul_f32 {v(A+2,2)}, {v(A+2,2)}, {v(RS[ai],2)} op_sel_hi:[1,0]")
        for ai in range(2):
            A = acc(ai, t) + 4*q
            a(f"v_cvt_pk_bf16_f32 v{S+2*ai}, v{A}, v{A+1}")
            a(f"v_cvt_pk_bf16_f32 v{S+2*ai+1}, v{A+2}, v{A+3}")
        a("s_nop 1")
        a(f"v_permlane32_swap_b32 v{S}, v{S+2}")
        a(f"v_permlane32_swap_b32 v{S+1}, v{S+3}")
        a(f"buffer_store_dwordx4 {v(S,4)}, v{5+SWZU[U]}, s[24:27], s37 offen{STP}")
        a("s_add_u32 s37, s37, 32768")
    prof_mark(a, 2)
    prof_end(a, 0, 24)

    a.label("K1_z")
    mainloop(3, "z")
    stats_epilogue(3)
    a("v_lshrrev_b32 v4, 5, v2")
    a("v_lshlrev_b32 v7, 2, v4")
    a("v_xor_b32 v7, v7, v2")
    a("v_lshlrev_b32 v5, 4, v7")
    a("v_xor_b32 v6, 0x480, v5")
    a("s_cmp_lt_u32 s14, 12")
    sel(a, 37, WS_Z1, WS_Z2R)
    a("s_lshl_b32 s36, s13, 2")
    a("s_lshl_b32 s15, s31, 1")
    a("s_add_u32 s36, s36, s15")
    a("s_mul_i32 s38, s36, 24")
    a("s_and_b32 s15, s14, 3")
    a("s_lshl_b32 s39, s15, 1")
    a("s_add_u32 s39, s39, s32")
    a("s_mul_i32 s15, s39, 3")
    a("s_add_u32 s38, s38, s15")
    a("s_lshl_b32 s38, s38, 11")
    a("s_add_u32 s37, s37, s38")
    c0 = -2.0 * math.sqrt(2.0 / math.pi) * math.log2(math.e)
    c1 = c0 * 0.044715
    K0, K1c, ONE = EX + 4, EX + 6, EX + 8
    a(f"v_mov_b32 v{K0}, {fhex(c0)}")
    a(f"v_mov_b32 v{K1c}, {fhex(c1)}")
    a(f"v_mov_b32 v{ONE}, 1.0")
    for i in range(4): a(f"v_mov_b32 v{SX+i}, 0")
    TM = XF[0][0]
    PK = [EX + 12, EX + 16, EX + 20, EX + 24]
    a("s_nop 4")
    cnt = 0
    for ai in range(2):
        for t in range(3):
            for u in range(2):
                A = acc(ai, t) + 8*u
                Tm = TM + (cnt % 2) * 8
                S = PK[cnt % 4]
                bc = "op_sel_hi:[1,0]"
                for i in range(4):
                    a(f"v_pk_mul_f32 {v(A+2*i,2)}, {v(A+2*i,2)}, {v(RHO[ai],2)} {bc}")
                for i in range(4):
                    a(f"v_pk_mul_f32 {v(Tm+2*i,2)}, {v(A+2*i,2)}, {v(A+2*i,2)}")
                for i in range(4):
                    a(f"v_pk_fma_f32 {v(Tm+2*i,2)}, {v(Tm+2*i,2)}, {v(K1c,2)}, {v(K0,2)} op_sel_hi:[1,0,0]")
                for i in range(4):
                    a(f"v_pk_mul_f32 {v(Tm+2*i,2)}, {v(Tm+2*i,2)}, {v(A+2*i,2)}")
                for i in range(8):
                    a(f"v_exp_f32 v{Tm+i}, v{Tm+i}")
                for i in range(4):
                    a(f"v_pk_add_f32 {v(Tm+2*i,2)}, {v(Tm+2*i,2)}, {v(ONE,2)} {bc}")
                for i in range(8):
                    a(f"v_rcp_f32 v{Tm+i}, v{Tm+i}")
                for i in range(4):
                    a(f"v_pk_mul_f32 {v(A+2*i,2)}, {v(A+2*i,2)}, {v(Tm+2*i,2)}")
                for i in range(4):
                    a(f"v_cvt_pk_bf16_f32 v{S+i}, v{A+2*i}, v{A+2*i+1}")
                a(f"buffer_store_dwordx4 {v(S,4)}, v{5+u}, s[24:27], s37 offen{STP}")
                for i in range(4):
                    a(f"v_dot2c_f32_bf16 v{SX+2*ai}, v{S+i}, v{ONES}")
                    a(f"v_dot2c_f32_bf16 v{SX+2*ai+1}, v{S+i}, v{S+i}")
                cnt += 1
            a(f"s_add_u32 s37, s37, {2048 if t < 2 else 24*2048 - 2*2048}")
    a("s_cmp_lt_u32 s14, 12")
    a("s_cbranch_scc1 K1_done")
    a("s_nop 2")
    a(f"v_permlane32_swap_b32 v{SX}, v{SX+2}")
    a(f"v_permlane32_swap_b32 v{SX+1}, v{SX+3}")
    a(f"v_add_f32 v{SX}, v{SX}, v{SX+2}")
    a(f"v_add_f32 v{SX+1}, v{SX+1}, v{SX+3}")
    a("v_and_b32 v3, 31, v2")
    a("v_lshlrev_b32 v3, 3, v3")
    a("v_lshl_add_u32 v3, v4, 11, v3")
    a("s_lshl_b32 s36, s36, 3")
    a("s_add_u32 s36, s36, s39")
    a("s_lshl_b32 s36, s36, 8")
    a(f"s_add_u32 s36, s36, {WS_ST}")
    a(f"buffer_store_dwordx2 {v(SX,2)}, v3, s[24:27], s36 offen")
    a.label("K1_done")
    prof_mark(a, 2)
    prof_end(a, 0, 24)
    a.label("K1_exit")
    a("s_endpgm")
    return R.n
```

```python
from asmlib import *
from layout import *
import os

SLOT = 13312
CPL = 12288
GR0 = 3 * SLOT
GSLOT = 10240
GRING = 3 * GSLOT
FLAGS = GR0 + 3 * 24576 + 4 * 6144
K2_LDS = FLAGS + 64
BIAS = 80.0
THR = 2.0 ** (60)
ACT_T16 = 44 * 1024

def gen_k2(a, kidx=2):
    kernel_begin(a, "k2_kernel")
    a("s_cmp_ge_u32 s2, 256")
    a("s_cbranch_scc1 K2_exit")
    prof_begin(a)
    a("s_load_dwordx2 s[4:5], s[0:1], 16")
    a("s_load_dwordx4 s[44:47], s[0:1], 40")
    a("s_load_dwordx2 s[8:9], s[0:1], 56")
    a("s_load_dwordx2 s[10:11], s[0:1], 80")
    a("v_lshrrev_b32 v1, 6, v0")
    a("v_and_b32 v2, 63, v0")
    a("v_readfirstlane_b32 s12, v1")
    a("s_and_b32 s13, s2, 7")
    a("s_lshl_b32 s13, s13, 2")
    a("s_lshr_b32 s15, s2, 6")
    a("s_add_u32 s13, s13, s15")
    a("s_bfe_u32 s14, s2, 0x30003")
    a("s_and_b32 s32, s13, 1")
    a("s_lshr_b32 s33, s13, 1")
    a("s_mul_i32 s33, s33, 5")
    a("s_mul_i32 s34, s32, 3")
    a("s_add_u32 s34, s34, s33")
    a("s_add_u32 s33, s33, 2")
    a("v_and_b32 v3, 31, v2")
    a("v_lshrrev_b32 v4, 5, v2")
    a("s_waitcnt lgkmcnt(0)")
    srd(a, 24, 10, 11, WS_SIZE)
    a("s_cmp_ge_u32 s12, 4")
    a("s_cbranch_scc1 K2_G")
    gen_A(a, kidx)
    a.label("K2_G")
    gen_G(a, kidx)
    a.label("K2_exit")
    a("s_endpgm")

def gen_A(a, kidx):
    R = Regs(12, 256)
    KA = R.alloc("ka"); KR = R.alloc("kr"); VA = R.alloc("va", 2)
    M = R.alloc("m", 4)
    QM = [R.alloc(f"qm{i}", 4, 4) for i in range(4)]
    QR = [R.alloc(f"qr{i}", 2) for i in range(4)]
    KM = [R.alloc(f"km{i}", 4, 4) for i in range(2)]
    KRm = [R.alloc(f"krm{i}", 2) for i in range(2)]
    VF = [R.alloc(f"vf{i}", 8, 4) for i in range(2)]
    S = [R.alloc(f"s{i}", 16, 4) for i in range(2)]
    P = [R.alloc(f"p{i}", 8, 4) for i in range(2)]
    O = [R.alloc(f"o{i}", 16, 4) for i in range(4)]
    X = R.alloc("x", 32, 4)
    a("s_and_b32 s35, s12, 1")
    a("s_lshr_b32 s36, s12, 1")
    a("s_lshl_b32 s37, s14, 2")
    a("s_lshl_b32 s15, s35, 1")
    a("s_add_u32 s37, s37, s15")
    a("s_add_u32 s38, s37, s36")
    a("s_xor_b32 s39, s38, 1")
    a("v_lshlrev_b32 v5, 2, v4")
    a("v_xor_b32 v5, v5, v3")
    a("v_lshlrev_b32 v5, 4, v5")
    a("v_lshl_add_u32 v6, v4, 15, v5")
    a("v_xor_b32 v7, 8, v3")
    a("v_lshlrev_b32 v7, 4, v7")
    a("s_lshl_b32 s15, s32, 3")
    a("v_add_u32 v7, s15, v7")
    a("s_lshl_b32 s40, s34, 5")
    a("s_add_u32 s41, s40, s39")
    a("s_add_u32 s40, s40, s38")
    a("s_lshl_b32 s40, s40, 10")
    a("s_lshl_b32 s41, s41, 10")
    a("s_lshl_b32 s42, s33, 5")
    a("s_add_u32 s43, s42, s39")
    a("s_add_u32 s42, s42, s38")
    a("s_lshl_b32 s42, s42, 10")
    a("s_lshl_b32 s43, s43, 10")
    for i in range(4):
        a(f"v_mov_b32 v{QR[i]}, 0")
        a(f"v_mov_b32 v{QR[i]+1}, 0")
    for i in range(4):
        a(f"buffer_load_dwordx4 {v(QM[i],4)}, v6, s[24:27], s{40+(i>>1)} offen offset:{512*(i&1)}")
    a("s_mov_b32 exec_hi, 0")
    for i in range(4):
        a(f"buffer_load_dwordx2 {v(QR[i],2)}, v7, s[24:27], s{42+(i>>1)} offen offset:{512*(i&1)}")
    a("s_mov_b32 exec_hi, -1")
    a(f"v_mov_b32 v{X}, 0x3f803f80")
    a(f"v_mov_b32 v{X+1}, 0")
    a(f"v_mov_b32 v{X+2}, 0x3f803f80")
    a(f"v_mov_b32 v{X+3}, 0")
    a("s_min_u32 s15, s12, 2")
    a(f"s_mul_i32 s15, s15, {SLOT}")
    a(f"s_add_u32 s15, s15, {CPL}")
    a("v_lshl_add_u32 v8, v2, 4, s15")
    a(f"ds_write_b128 v8, {v(X,4)}")
    a("s_lshl_b32 s15, s12, 2")
    a(f"s_add_u32 s15, s15, {FLAGS}")
    a(f"v_mov_b32 v8, s15")
    a(f"ds_write_b32 v8, v{X+1}")
    def lds_addrs(sb, sc):
        a("v_lshlrev_b32 v5, 2, v4")
        a("v_xor_b32 v5, v5, v3")
        a("v_lshlrev_b32 v5, 4, v5")
        a(f"v_lshl_add_u32 v{KA}, v4, 10, v5")
        a(f"v_add_u32 v{KA}, s{sb}, v{KA}")
        a("v_xor_b32 v7, 8, v3")
        a("v_lshlrev_b32 v7, 4, v7")
        a("s_lshl_b32 s15, s32, 3")
        a(f"s_add_u32 s15, s15, s{sb}")
        a("s_add_u32 s15, s15, 2048")
        a("v_add_u32 v8, s15, v7")
        a(f"v_lshl_add_u32 v9, v3, 4, s{sc}")
        a("v_cmp_gt_u32 vcc, 32, v2")
        a("v_bfe_u32 v10, v2, 2, 2")
        a("v_lshl_add_u32 v10, v4, 2, v10")
        a(f"v_cndmask_b32 v{KR}, v9, v8, vcc")
        a("v_bfe_u32 v8, v2, 4, 1")
        a("v_and_b32 v9, 3, v2")
        a("v_lshl_add_u32 v8, v8, 2, v9")
        a("v_lshrrev_b32 v9, 1, v8")
        a("v_cmp_lt_u32 vcc, 4, v8")
        a("v_and_b32 v11, 1, v8")
        a("s_nop 0")
        a("v_cndmask_b32 v9, v9, 3, vcc")
        a("v_cmp_eq_u32 s[50:51], 4, v8")
        a("v_mov_b32 v8, s32")
        a("s_nop 0")
        a("v_cndmask_b32 v11, v11, v8, s[50:51]")
        a("v_lshlrev_b32 v8, 2, v9")
        a("v_xor_b32 v8, v8, v10")
        a("v_lshlrev_b32 v8, 4, v8")
        a("v_lshl_add_u32 v8, v11, 3, v8")
        a("v_lshlrev_b32 v9, 10, v9")
        a(f"s_add_u32 s15, s{sb}, 3072")
        a("v_add_u32 v9, s15, v9")
        a(f"v_mov_b32 v11, s{sc}")
        a("v_cndmask_b32 v9, v9, v11, vcc")
        a(f"v_add_u32 v{VA}, v8, v9")
        a(f"v_xor_b32 v{VA+1}, 0x80, v{VA}")
    a("s_mul_i32 s48, s36, 6144")
    a(f"s_movk_i32 s49, {CPL}")
    lds_addrs(48, 49)
    for i in range(8):
        a(f"v_mov_b32 v{P[1]+i}, 0")
        a(f"v_mov_b32 v{VF[1]+i}, 0")
    for i in range(4):
        for j in range(16): a(f"v_mov_b32 v{O[i]+j}, 0")
    a("s_mov_b32 s48, 0")
    a("s_mov_b32 s49, 0")
    a(f"s_mov_b32 s52, {fhex(THR)}")
    a("s_waitcnt vmcnt(0) lgkmcnt(0)")
    a("s_barrier")
    prof_mark(a, 0)
    def rdK(kt):
        return [f"ds_read_b128 {v(KM[kt],4)}, v{KA} offset:{512*kt}", f"ds_read_b64 {v(KRm[kt],2)}, v{KR} offset:{512*kt}"]
    def rdV(kt):
        return [f"ds_read_b64_tr_b16 {v(VF[kt]+4*j+2*e,2)}, v{VA+e} offset:{512*kt+256*j}" for j in range(2) for e in range(2)]
    for ins in rdK(0) + rdK(1) + rdV(0): a(ins)
    a("s_waitcnt lgkmcnt(6)")
    TS = [S[0], S[1], X, X + 16]
    for i in range(4):
        a(f"v_mfma_f32_32x32x16_bf16 {v(TS[i],16)}, {v(KM[0],4)}, {v(QM[i],4)}, 0")
        a(f"v_mfma_f32_32x32x8_bf16 {v(TS[i],16)}, {v(KRm[0],2)}, {v(QR[i],2)}, {v(TS[i],16)}")
    a("s_nop 5")
    def set_m(i, src):
        a(f"v_cvt_pk_bf16_f32 v9, v{src}, v{src}")
        a("v_and_b32 v9, 0xffff0000, v9")
        a(f"v_sub_f32 v{src}, v{src}, v9")
        a(f"v_cvt_pk_bf16_f32 v{src}, -v9, -v{src}")
        a(f"v_and_b32 v{M+i}, 0xffff0000, v{src}")
        a(f"v_sub_f32 v{M+i}, v9, v{M+i}")
        a("s_mov_b32 exec_lo, 0")
        a(f"v_mov_b32 v{QR[i]}, v{src}")
        a("s_mov_b32 exec_lo, -1")
    for i in range(4):
        t = TS[i]
        a(f"v_max3_f32 v{t}, v{t}, v{t+1}, v{t+2}")
        for j in range(3, 15, 2):
            a(f"v_max3_f32 v{t}, v{t}, v{t+j}, v{t+j+1}")
        a(f"v_max_f32 v{t}, v{t}, v{t+15}")
        a(f"v_mov_b32 v{t+1}, v{t}")
    a("s_nop 0")
    for i in range(4):
        a(f"v_permlane32_swap_b32 v{TS[i]}, v{TS[i]+1}")
    for i in range(4):
        t = TS[i]
        a(f"v_max_f32 v{t}, v{t}, v{t+1}")
        a(f"v_add_f32 v{t}, {fhex(BIAS)}, v{t}")
        a(f"v_rndne_f32 v{t}, v{t}")
        a(f"v_cvt_pk_bf16_f32 v{M+i}, v{t}, v{t}")
        a(f"v_and_b32 v{M+i}, 0xffff0000, v{M+i}")
        a(f"v_sub_f32 v{t}, v{t}, v{M+i}")
        a(f"v_cvt_pk_bf16_f32 v{5+i}, -v{M+i}, -v{t}")
    a("s_mov_b32 exec_lo, 0")
    for i in range(4):
        a(f"v_mov_b32 v{QR[i]}, v{5+i}")
    a("s_mov_b32 exec_lo, -1")
    a(f"v_mfma_f32_32x32x16_bf16 {v(S[0],16)}, {v(KM[0],4)}, {v(QM[0],4)}, 0")
    a(f"v_mfma_f32_32x32x8_bf16 {v(S[0],16)}, {v(KRm[0],2)}, {v(QR[0],2)}, {v(S[0],16)}")
    for i in range(4):
        a(f"v_and_b32 v{5+i}, 0xffff0000, v{5+i}")
        a(f"v_sub_f32 v{M+i}, v{M+i}, v{5+i}")
    a("s_nop 2")
    a("s_waitcnt lgkmcnt(0)")
    prof_mark(a, 1)
    rescale = []
    trace_init(a, 250, 79)
    a.label("K2A_loop")
    for nn in range(16):
        n = nn & 7
        qi, kt = n & 3, n >> 2
        qn, ktn = (n + 1) & 3, ((n + 1) >> 2) & 1
        qp, ktp = (n - 1) & 3, ((n - 1) >> 2) & 1
        Sc, Sn, Pc, Pp = S[n & 1], S[(n + 1) & 1], P[n & 1], P[(n + 1) & 1]
        mf = [f"v_mfma_f32_32x32x16_bf16 {v(O[qp],16)}, {v(VF[ktp],4)}, {v(Pp,4)}, {v(O[qp],16)}",
              f"v_mfma_f32_32x32x16_bf16 {v(Sn,16)}, {v(KM[ktn],4)}, {v(QM[qn],4)}, 0",
              f"v_mfma_f32_32x32x8_bf16 {v(Sn,16)}, {v(KRm[ktn],2)}, {v(QR[qn],2)}, {v(Sn,16)}",
              f"v_mfma_f32_32x32x16_bf16 {v(O[qp],16)}, {v(VF[ktp]+4,4)}, {v(Pp+4,4)}, {v(O[qp],16)}"]
        e = [f"v_exp_f32 v{Sc+i}, v{Sc+i}" for i in range(16)]
        c = [f"v_cvt_pk_bf16_f32 v{Pc+i}, v{Sc+2*i}, v{Sc+2*i+1}" for i in range(8)]
        rd = {4: rdK(0), 5: rdV(0)[:2], 6: rdV(0)[2:], 7: rdK(1), 1: rdV(1)[:2], 2: rdV(1)[2:]}.get(n, [])
        post = {g: [] for g in range(4)}
        if n in (3, 7): post[0].append("s_waitcnt lgkmcnt(0)")
        if n == 3:
            post[1] += ["s_add_u32 s49, s49, 1"]
            post[2] += ["s_cmp_eq_u32 s49, 3"]
            post[3] += [f"s_movk_i32 s53, {SLOT}", f"s_cmovk_i32 s53, {(-2*SLOT) & 0xffff}", "s_cmov_b32 s49, 0"]
        if n == 4:
            post[0].append("BARTRACE")
            post[1].append(rd[0]); post[2].append(rd[1])
        elif n == 7:
            post[1].append(rd[0]); post[2].append(rd[1])
            if nn == 15: post[3] += ["s_add_u32 s48, s48, 1", "s_cmp_lt_u32 s48, 8"]
        elif rd:
            post[0].append(rd[0]); post[1].append(rd[1])
        for g in range(4):
            a(mf[g])
            for ins in post[g]:
                if ins == "BARTRACE":
                    trace(a, 250, 79); a("s_barrier"); trace(a, 250, 79)
                else: a(ins)
            for ins in e[4*g:4*g+4]: a(ins)
            if g == 0 and nn in (8, 10) and not os.environ.get("K2_NOCHECK"):
                qa, qb_ = (n + 1) & 3, (n + 2) & 3
                a(f"v_max_f32 v5, v{O[qa]+8}, v{O[qb_]+8}")
                a("v_cmp_lt_f32 vcc, s52, v5")
                a("s_cmp_lg_u32 vcc_hi, 0")
                a(f"s_cbranch_scc1 K2A_rs{n}")
                a.label(f"K2A_rs{n}_ret")
                rescale.append((n, qa, qb_))
            if g == 0 and n == 4:
                for r_ in (KA, KR, VA, VA + 1): a(f"v_add_u32 v{r_}, s53, v{r_}")
            if g > 0:
                for ins in c[2*(g-1):2*(g-1)+2]: a(ins)
        for ins in c[6:8]: a(ins)
    a("s_cbranch_scc1 K2A_loop")
    a("s_nop 1")
    a(f"v_mfma_f32_32x32x16_bf16 {v(O[3],16)}, {v(VF[1],4)}, {v(P[1],4)}, {v(O[3],16)}")
    a(f"v_mfma_f32_32x32x16_bf16 {v(O[3],16)}, {v(VF[1]+4,4)}, {v(P[1]+4,4)}, {v(O[3],16)}")
    prof_mark(a, 2)
    SCR = 7168
    for i in range(4):
        a(f"v_mul_f32 v{5+i}, 0, v{O[0]+i}")
    for q in range(4):
        for j in range(12):
            if q == 0 and j < 4: continue
            a(f"v_fmac_f32 v{5+(j&3)}, 0, v{O[q]+j}")
    a("v_add_f32 v5, v5, v6")
    a("v_add_f32 v7, v7, v8")
    a("v_cmp_u_f32 vcc, v5, v7")
    if os.environ.get("K2_FORCEFB"): a("s_mov_b64 vcc, -1")
    a("s_cbranch_vccnz K2A_fb")
    a.label("K2A_comb")
    a(f"s_mul_i32 s15, s12, {SCR}")
    a("v_lshl_add_u32 v5, v2, 4, s15")
    a("v_lshl_add_u32 v6, v2, 2, s15")
    a("s_xor_b32 s15, s12, 2")
    a(f"s_mul_i32 s15, s15, {SCR}")
    a("v_lshl_add_u32 v7, v2, 4, s15")
    a("v_lshl_add_u32 v8, v2, 2, s15")
    a("s_waitcnt lgkmcnt(0)")
    for qd in range(3):
        a(f"ds_write_b128 v5, {v(O[2]+4*qd,4)} offset:{1024*qd}")
    a(f"ds_write_b32 v6, v{M+2} offset:6144")
    a(f"ds_write_b32 v6, v{M+3} offset:6400")
    for qd in range(3):
        a(f"ds_write_b128 v5, {v(O[3]+4*qd,4)} offset:{3072+1024*qd}")
    a("v_lshrrev_b32 v9, 4, v3")
    a(f"s_mov_b32 s15, {ACT_T16}")
    a("v_mul_lo_u32 v9, v9, s15")
    a("v_and_b32 v10, 15, v3")
    a("v_lshl_add_u32 v10, v10, 4, v9")
    a("v_lshl_add_u32 v9, v4, 8, v10")
    a("s_lshl_b32 s40, s38, 2")
    a("s_mul_i32 s40, s40, 44")
    a("s_lshr_b32 s15, s13, 1")
    a("s_add_u32 s41, s40, s15")
    a("s_lshl_b32 s41, s41, 10")
    a("s_lshl_b32 s15, s32, 9")
    a("s_add_u32 s41, s41, s15")
    a(f"s_add_u32 s41, s41, {WS_ACT}")
    a("s_lshr_b32 s15, s13, 3")
    a("s_add_u32 s42, s40, s15")
    a("s_lshl_b32 s42, s42, 10")
    a("s_bfe_u32 s15, s13, 0x20001")
    a("s_lshl_b32 s15, s15, 8")
    a("s_add_u32 s42, s42, s15")
    a("s_lshl_b32 s15, s32, 3")
    a("s_add_u32 s42, s42, s15")
    a(f"s_add_u32 s42, s42, {WS_ACT + 16*1024}")
    a("s_lshl_b32 s15, s12, 2")
    a(f"s_add_u32 s15, s15, {FLAGS}")
    a("v_mov_b32 v5, s15")
    a("v_xor_b32 v6, 8, v5")
    a("v_mov_b32 v11, 1")
    a("s_waitcnt lgkmcnt(0)")
    a("ds_write_b32 v5, v11")
    a.label("K2A_poll")
    a("ds_read_b32 v11, v6")
    a("s_waitcnt lgkmcnt(0)")
    a("v_cmp_eq_u32 vcc, 0, v11")
    a("s_cbranch_vccnz K2A_poll")
    for i in range(2):
        a(f"ds_read_b32 v{X+24+i}, v8 offset:{6144+256*i}")
        for qd in range(3):
            a(f"ds_read_b128 {v(X+12*i+4*qd,4)}, v7 offset:{3072*i+1024*qd}")
    for i in range(2):
        a(f"s_waitcnt lgkmcnt({4*(1-i)})")
        mb = X + 24 + i
        a(f"v_max_f32 v5, v{M+i}, v{mb}")
        a(f"v_sub_f32 v6, v{M+i}, v5")
        a(f"v_sub_f32 v7, v{mb}, v5")
        a("v_cvt_i32_f32 v6, v6")
        a("v_cvt_i32_f32 v7, v7")
        for j in range(12):
            a(f"v_ldexp_f32 v{O[i]+j}, v{O[i]+j}, v6")
            a(f"v_ldexp_f32 v{X+12*i+j}, v{X+12*i+j}, v7")
        for j in range(12):
            a(f"v_add_f32 v{O[i]+j}, v{O[i]+j}, v{X+12*i+j}")
        a(f"v_mov_b32 v5, v{O[i]+8}")
        a(f"v_mov_b32 v6, v{O[i]+8}")
        a("s_nop 1")
        a("v_permlane32_swap_b32 v5, v6")
        a("v_rcp_f32 v6, v6")
        a("s_nop 0")
        for j in range(12):
            a(f"v_mul_f32 v{O[i]+j}, v{O[i]+j}, v6")
        for j in range(6):
            a(f"v_cvt_pk_bf16_f32 v{S[i]+j}, v{O[i]+2*j}, v{O[i]+2*j+1}")
        a(f"buffer_store_dwordx4 {v(S[i],4)}, v9, s[24:27], s41 offen")
        a("s_mov_b32 exec_hi, 0")
        a(f"buffer_store_dwordx2 {v(S[i]+4,2)}, v10, s[24:27], s42 offen")
        a("s_mov_b32 exec_hi, -1")
        if i == 0:
            a(f"s_add_u32 s41, s41, {2*ACT_T16}")
            a(f"s_add_u32 s42, s42, {2*ACT_T16}")
    prof_mark(a, 3)
    trace_dump(a, 250, kidx, 24)
    prof_end(a, kidx, 24)
    for (n, qa, qb_) in rescale:
        a.label(f"K2A_rs{n}")
        for q in (qa, qb_):
            a(f"v_mov_b32 v5, v{O[q]+8}")
            a(f"v_mov_b32 v6, v{O[q]+8}")
            a("s_nop 1")
            a("v_permlane32_swap_b32 v5, v6")
            a("v_frexp_exp_i32_f32 v7, v6")
            a("v_cvt_f32_i32 v7, v7")
            a(f"v_add_f32 v7, {fhex(BIAS)}, v7")
            a("v_cmp_lt_f32 vcc, s52, v6")
            a(f"v_mov_b32 v8, v{M+q}")
            a("s_nop 0")
            a("v_cndmask_b32 v7, 0, v7, vcc")
            a(f"v_add_f32 v7, v7, v8")
            set_m(q, 7)
            a(f"v_sub_f32 v8, v8, v{M+q}")
            a("v_cvt_i32_f32 v8, v8")
            for j in range(16):
                a(f"v_ldexp_f32 v{O[q]+j}, v{O[q]+j}, v8")
        a("s_nop 1")
        a(f"s_branch K2A_rs{n}_ret")

    a.label("K2A_fb")
    a(f"s_mul_i32 s48, s12, {SCR}")
    a("s_add_u32 s49, s48, 6144")
    a("s_waitcnt lgkmcnt(0)")
    lds_addrs(48, 49)
    a(f"v_mov_b32 v{X}, 0x3f803f80")
    a(f"v_mov_b32 v{X+1}, 0")
    a(f"v_mov_b32 v{X+2}, 0x3f803f80")
    a(f"v_mov_b32 v{X+3}, 0")
    a("v_lshl_add_u32 v8, v2, 4, s49")
    a(f"ds_write_b128 v8, {v(X,4)}")
    a("v_lshlrev_b32 v11, 4, v2")
    a("s_mov_b32 exec_lo, 0")
    for i in range(4): a(f"v_mov_b32 v{QR[i]}, 0")
    a("s_mov_b32 exec_lo, -1")
    for i in range(4):
        a(f"v_mov_b32 v{M+i}, 0xff800000")
        for j in range(16): a(f"v_mov_b32 v{O[i]+j}, 0")
    a("s_mov_b32 s54, 0")
    a.label("K2A_fb_pass")
    a("s_lshl_b32 s15, s36, 4")
    for d, src, ty in ((56, 34, 80), (57, 33, 80), (58, 34, 160), (59, 33, 160)):
        a(f"s_add_u32 s{d}, s{src}, {ty}")
        a(f"s_lshl_b32 s{d}, s{d}, 5")
        a(f"s_add_u32 s{d}, s{d}, s15")
        a(f"s_lshl_b32 s{d}, s{d}, 10")
    a("s_mov_b32 s55, 0")
    a.label("K2A_fb_blk")
    for pl, (d, add) in enumerate(((56, 0), (56, 32768), (57, 0), (58, 0), (58, 32768), (59, 0))):
        a(f"s_add_u32 m0, s48, {1024*pl}")
        a(f"s_add_u32 s15, s{d}, {add}")
        a("buffer_load_dwordx4 v11, s[24:27], s15 offen lds")
    for d in (56, 57, 58, 59): a(f"s_add_u32 s{d}, s{d}, 1024")
    a("s_waitcnt vmcnt(0) lgkmcnt(0)")
    for ins in rdK(0) + rdK(1) + rdV(0) + rdV(1): a(ins)
    a("s_waitcnt lgkmcnt(0)")
    a("s_mov_b32 s60, 0")
    a.label("K2A_fb_kt")
    for q in range(4):
        a(f"v_mfma_f32_32x32x16_bf16 {v(S[0],16)}, {v(KM[0],4)}, {v(QM[q],4)}, 0")
        a(f"v_mfma_f32_32x32x8_bf16 {v(S[0],16)}, {v(KRm[0],2)}, {v(QR[q],2)}, {v(S[0],16)}")
        a("s_nop 15")
        a("s_cmp_eq_u32 s54, 0")
        a(f"s_cbranch_scc0 K2A_fb_e{q}")
        for j in range(0, 16, 2):
            a(f"v_max3_f32 v{M+q}, v{M+q}, v{S[0]+j}, v{S[0]+j+1}")
        a(f"s_branch K2A_fb_n{q}")
        a.label(f"K2A_fb_e{q}")
        for j in range(16): a(f"v_exp_f32 v{S[0]+j}, v{S[0]+j}")
        a("s_nop 0")
        for j in range(8): a(f"v_cvt_pk_bf16_f32 v{P[0]+j}, v{S[0]+2*j}, v{S[0]+2*j+1}")
        a("s_nop 1")
        a(f"v_mfma_f32_32x32x16_bf16 {v(O[q],16)}, {v(VF[0],4)}, {v(P[0],4)}, {v(O[q],16)}")
        a(f"v_mfma_f32_32x32x16_bf16 {v(O[q],16)}, {v(VF[0]+4,4)}, {v(P[0]+4,4)}, {v(O[q],16)}")
        a.label(f"K2A_fb_n{q}")
    for j in range(4): a(f"v_mov_b32 v{KM[0]+j}, v{KM[1]+j}")
    for j in range(2): a(f"v_mov_b32 v{KRm[0]+j}, v{KRm[1]+j}")
    for j in range(8): a(f"v_mov_b32 v{VF[0]+j}, v{VF[1]+j}")
    a("s_add_u32 s60, s60, 1")
    a("s_cmp_lt_u32 s60, 2")
    a("s_cbranch_scc1 K2A_fb_kt")
    a("s_add_u32 s55, s55, 1")
    a("s_cmp_lt_u32 s55, 16")
    a("s_cbranch_scc1 K2A_fb_blk")
    a("s_nop 15")
    a("s_cmp_eq_u32 s54, 0")
    a("s_cbranch_scc0 K2A_comb")
    for q in range(4):
        a(f"v_mov_b32 v5, v{M+q}")
        a(f"v_mov_b32 v6, v{M+q}")
        a("s_nop 1")
        a("v_permlane32_swap_b32 v5, v6")
        a("v_max_f32 v5, v5, v6")
        a("v_rndne_f32 v5, v5")
        a("v_cvt_pk_bf16_f32 v6, v5, v5")
        a("v_and_b32 v6, 0xffff0000, v6")
        a("v_sub_f32 v7, v5, v6")
        a("v_cvt_pk_bf16_f32 v8, -v6, -v7")
        a("v_and_b32 v7, 0xffff0000, v8")
        a(f"v_sub_f32 v{M+q}, v6, v7")
        a("s_mov_b32 exec_lo, 0")
        a(f"v_mov_b32 v{QR[q]}, v8")
        a("s_mov_b32 exec_lo, -1")
    a("s_mov_b32 s54, 1")
    a("s_branch K2A_fb_pass")

def gen_G(a, kidx):
    from kn import ln_scalars
    GS = 24576
    NSCR = GR0 + 3 * GS
    D0 = 4
    R = Regs(12, 250)
    VL = R.alloc("vl")
    VW = R.alloc("vw", 2)
    BA = R.alloc("ba", 2)
    Z1 = R.alloc("z1", 12, 4)
    BS = R.alloc("bs", 2)
    BF = [[R.alloc(f"bf{ks}{t}", 4, 4) for t in range(4)] for ks in range(3)]
    AF = [[R.alloc(f"af{ks}{t}", 4, 4) for t in range(3)] for ks in range(3)]
    ACC = R.alloc("acc", 48, 4)
    WT = R.alloc("wt", 8, 4)
    def acc(tt, ft): return ACC + (tt * 3 + ft) * 4
    a("s_sub_u32 s12, s12, 4")
    if os.environ.get("K2_GPRIO"): a("s_setprio " + os.environ["K2_GPRIO"])
    trace_init(a, 250, 79)
    a(f"v_lshlrev_b32 v{VL}, 4, v2")
    a("s_and_b32 s15, s12, 1")
    a("s_add_u32 s35, s15, 1")
    a("s_mul_i32 s35, s35, 80")
    a("s_lshr_b32 s36, s12, 1")
    a("s_lshl_b32 s37, s36, 4")
    a("s_add_u32 s38, s34, s35")
    a("s_lshl_b32 s38, s38, 5")
    a("s_add_u32 s38, s38, s37")
    a("s_lshl_b32 s38, s38, 10")
    a(f"s_add_u32 s39, s38, {32768-1024}")
    a("s_add_u32 s40, s33, s35")
    a("s_lshl_b32 s40, s40, 5")
    a("s_add_u32 s40, s40, s37")
    a("s_lshl_b32 s40, s40, 10")
    a("s_sub_u32 s40, s40, 2048")
    a("s_mul_i32 s41, s12, 3072")
    a("s_mov_b32 s42, 0")
    def kv_ops():
        return ["s_mov_b32 m0, s41\ns_add_u32 s42, s42, 1\n" + f"buffer_load_dwordx4 v{VL}, s[24:27], s38 offen lds",
                f"buffer_load_dwordx4 v{VL}, s[24:27], s39 offen offset:1024 lds\ns_add_u32 s38, s38, 1024\ns_add_u32 s39, s39, 1024",
                f"buffer_load_dwordx4 v{VL}, s[24:27], s40 offen offset:2048 lds\ns_add_u32 s40, s40, 1024\ns_cmp_eq_u32 s42, 3\n"
                f"s_movk_i32 s15, {SLOT}\ns_cmovk_i32 s15, {(-2*SLOT) & 0xffff}\ns_cmov_b32 s42, 0\ns_add_u32 s41, s41, s15"]
    def issue_kv():
        for o in kv_ops(): a(o)
    for _ in range(2): issue_kv()
    NR = BF[0][0]
    NS = BF[1][0]
    a("v_lshlrev_b32 v7, 2, v4")
    a("v_xor_b32 v7, v7, v2")
    a("v_lshlrev_b32 v7, 4, v7")
    a("v_xor_b32 v8, 0x80, v7")
    a("v_lshlrev_b32 v9, 3, v3")
    a("v_lshrrev_b32 v5, 4, v2")
    a("v_and_b32 v6, 15, v2")
    a("s_mul_i32 s66, s12, 6144")
    a(f"s_add_u32 s66, s66, {NSCR}")
    def norm_load():
        a("s_mul_i32 s15, s64, 48")
        a("s_mul_i32 s67, s65, 3")
        a("s_add_u32 s15, s15, s67")
        a("s_lshl_b32 s67, s15, 10")
        a(f"s_add_u32 s68, s67, {WS_Z2R}")
        a("s_and_b32 s15, s65, 1")
        a("s_lshl_b32 s69, s15, 7")
        a("v_xor_b32 v10, s69, v7")
        a("v_xor_b32 v11, s69, v8")
        a("s_lshl_b32 s15, s64, 11")
        a(f"s_add_u32 s15, s15, {WS_ST}")
        for p in range(8):
            a(f"buffer_load_dwordx2 {v(NS+2*p,2)}, v9, s[24:27], s15 offen offset:{256*p}")
        for i in range(3):
            a(f"buffer_load_dwordx4 {v(NR+4*i,4)}, v{10+(i&1)}, s[24:27], s68 offen offset:{1024*i}")
    def norm_compute():
        for p in range(1, 8):
            a(f"v_add_f32 v{NS}, v{NS}, v{NS+2*p}")
            a(f"v_add_f32 v{NS+1}, v{NS+1}, v{NS+2*p+1}")
        ln_scalars(a, NS, NS+1, 768, NS+2, NS+3)
        a(f"v_mul_f32 v{NS+2}, v{NS+2}, v{NS+3}")
        for i in range(12):
            a(f"v_lshlrev_b32 v{NS+4}, 16, v{NR+i}")
            a(f"v_and_b32 v{NS+5}, 0xffff0000, v{NR+i}")
            a(f"v_fma_f32 v{NS+4}, v{NS+4}, v{NS+3}, v{NS+2}")
            a(f"v_fma_f32 v{NS+5}, v{NS+5}, v{NS+3}, v{NS+2}")
            a(f"v_cvt_pk_bf16_f32 v{NR+i}, v{NS+4}, v{NS+5}")
        a(f"v_add_u32 v10, s66, v{VL}")
        for i in range(3):
            a(f"ds_write_b128 v10, {v(NR+4*i,4)} offset:{1024*i}")
        a("v_bfe_u32 v11, v2, 2, 2")
        a("v_lshl_add_u32 v11, v5, 3, v11")
        a("v_lshlrev_b32 v11, 4, v11")
        a("v_and_b32 v10, 1, v2")
        a("v_lshl_add_u32 v11, v10, 9, v11")
        a("v_bfe_u32 v10, v2, 1, 1")
        a("v_lshl_add_u32 v11, v10, 3, v11")
        a("v_add_u32 v11, s66, v11")
        a(f"s_add_u32 s68, s67, {WS_Z2N}")
        a("s_waitcnt lgkmcnt(0)")
        for i in range(3):
            for e in range(2):
                a(f"ds_read_b64_tr_b16 {v(NR+4*i+2*e,2)}, v11 offset:{1024*i+64*e}")
        a("s_waitcnt lgkmcnt(0)")
        for i in range(3):
            a(f"buffer_store_dwordx4 {v(NR+4*i,4)}, v{VL}, s[24:27], s68 offen offset:{1024*i} sc1")
    a("s_lshl_b32 s15, s2, 2")
    a("s_add_u32 s15, s15, s12")
    a("s_lshr_b32 s64, s15, 4")
    a("s_and_b32 s65, s15, 15")
    norm_load()
    srd(a, 16, 44, 45, 2048 * 2048 * 2)
    srd(a, 20, 46, 47, 4096)
    srd(a, 28, 10, 11, WS_Z2N + 64*48*1024)
    a("s_and_b32 s48, s2, 3")
    a("s_lshl_b32 s48, s48, 3")
    a("s_add_u32 s48, s48, s14")
    a("s_bfe_u32 s49, s2, 0x10002")
    a("s_lshl_b32 s49, s49, 2")
    a("s_lshr_b32 s15, s2, 6")
    a("s_add_u32 s49, s49, s15")
    a("s_and_b32 s56, s12, 1")
    a("s_lshr_b32 s57, s12, 1")
    a("s_lshl_b32 s70, s49, 1")
    a("s_add_u32 s70, s70, s57")
    a("s_mul_i32 s50, s56, 48")
    a("s_mul_i32 s15, s70, 3")
    a("s_add_u32 s50, s50, s15")
    a("s_lshl_b32 s50, s50, 10")
    a(f"s_add_u32 s50, s50, {WS_Z2N}")
    a("s_lshl_b32 s51, s48, 18")
    a("s_lshl_b32 s15, s12, 16")
    a("s_add_u32 s51, s51, s15")
    a("v_lshrrev_b32 v10, 3, v2")
    a("v_and_b32 v11, 7, v2")
    for i in range(2):
        a(f"v_add_u32 v{VW+i}, {4*i}, v5")
        a(f"v_xor_b32 v{VW+i}, v{VW+i}, v11")
        a(f"v_lshlrev_b32 v{VW+i}, 4, v{VW+i}")
        a(f"v_lshl_add_u32 v{VW+i}, v10, 12, v{VW+i}")
    a(f"v_add_u32 v{VW+1}, {8*4096-1024}, v{VW+1}")
    a("s_lshl_b32 s52, s12, 11")
    a(f"s_add_u32 s52, s52, {GR0}")
    a("s_mov_b32 s54, 0")
    a(f"s_mov_b32 s77, {GS}")
    a(f"s_mov_b32 s78, {(-2*GS) & 0xffffffff}")
    def w_ops():
        o = []
        for sb in range(3):
            o.append(f"s_add_u32 m0, s52, {8192*sb}\n" + ("s_add_u32 s54, s54, 1\n" if sb == 0 else "s_add_u32 s51, s51, 128\n") + f"buffer_load_dwordx4 v{VW}, s[16:19], s51 offen lds")
            o.append(f"buffer_load_dwordx4 v{VW+1}, s[16:19], s51 offen offset:1024 lds")
        o[-1] += "\ns_add_u32 s51, s51, 128\ns_cmp_eq_u32 s54, 3\ns_cselect_b32 s15, s78, s77\ns_cmov_b32 s54, 0\ns_add_u32 s52, s52, s15"
        return o
    def z_ops(j):
        o = [f"buffer_load_dwordx4 {v(AF[j][ft],4)}, v{VL}, s[28:31], s50 offen offset:{1024*ft} sc1" for ft in range(3)]
        o[-1] += f"\ns_add_u32 s50, s50, {96*1024}"
        return o
    a("v_lshrrev_b32 v10, 1, v6")
    a("s_lshl_b32 s15, s56, 2")
    a("v_or_b32 v11, s15, v5")
    a("v_xor_b32 v10, v10, v11")
    a("v_lshlrev_b32 v10, 4, v10")
    a("v_lshl_add_u32 v10, v6, 7, v10")
    a("s_lshl_b32 s15, s56, 12")
    a(f"v_add_u32 v10, s15, v10")
    a(f"v_xor_b32 v11, 0x1000, v10")
    a(f"v_add_u32 v{BA}, {GR0}, v10")
    a(f"v_add_u32 v{BA+1}, {GR0}, v11")
    for i in range(48): a(f"v_mov_b32 v{ACC+i}, 0")
    a("s_mov_b32 s76, 0")
    a("s_waitcnt vmcnt(14)")
    a("s_barrier")
    issue_kv()
    a("s_waitcnt vmcnt(3)")
    a("s_setprio 1")
    norm_compute()
    a("s_setprio 0")
    trace(a, 250, 79)
    a("s_barrier")
    trace(a, 250, 79)
    a("s_lshl_b32 s15, s65, 6")
    a("s_add_u32 s15, s15, s64")
    a("s_lshl_b32 s15, s15, 2")
    a(f"s_add_u32 s71, s15, {WS_CNT}")
    a("v_mov_b32 v10, 1")
    a("v_mov_b32 v11, 0")
    a("s_waitcnt vmcnt(0)")
    a("s_mov_b64 exec, 1")
    a("buffer_store_dword v10, v11, s[24:27], s71 offen sc1")
    a("s_mov_b64 exec, -1")
    issue_kv()
    trace(a, 250, 79)
    a("s_barrier")
    issue_kv()
    a("v_and_b32 v10, 1, v5")
    a("v_lshrrev_b32 v11, 1, v5")
    a("s_lshl_b32 s60, s48, 1")
    a("s_add_u32 s60, s60, s56")
    for ft in range(3):
        a(f"s_mul_i32 s15, s70, 3")
        a(f"s_add_u32 s15, s15, {ft}")
        a(f"s_and_b32 s58, s15, 1")
        a(f"s_lshl_b32 s58, s58, 1")
        a(f"s_lshr_b32 s15, s15, 1")
        a(f"s_mul_i32 s59, s60, 24")
        a(f"s_add_u32 s15, s15, s59")
        a(f"s_lshl_b32 s15, s15, 11")
        a(f"s_add_u32 s59, s15, {WS_Z1}")
        a(f"v_or_b32 v{WT}, s58, v10")
        a(f"v_lshlrev_b32 v{WT+1}, 2, v{WT}")
        a(f"v_xor_b32 v{WT+1}, v{WT+1}, v6")
        a(f"v_lshlrev_b32 v{WT+1}, 4, v{WT+1}")
        a(f"v_lshl_add_u32 v{WT+1}, v{WT}, 9, v{WT+1}")
        a(f"v_lshl_add_u32 v{WT+1}, v11, 3, v{WT+1}")
        for tt in range(2):
            a(f"buffer_load_dwordx2 {v(Z1+(tt*3+ft)*2,2)}, v{WT+1}, s[24:27], s59 offen offset:{256*tt}")
    a(f"v_lshlrev_b32 v{WT}, 1, v6")
    a("s_lshl_b32 s59, s60, 6")
    for tt in range(2):
        a(f"buffer_load_ushort v{BS+tt}, v{WT}, s[20:23], s59 offen offset:{32*tt}")
    a(f"s_lshl_b32 s80, s2, 2")
    a(f"s_add_u32 s80, s80, s12")
    a(f"s_min_u32 s80, s80, 879")
    a(f"s_mul_hi_u32 s81, s80, 0xCCCCCCD")
    a(f"s_mul_i32 s15, s81, 20")
    a(f"s_sub_u32 s82, s80, s15")
    a(f"s_mul_i32 s83, s81, 40")
    a(f"s_mov_b32 s6, 24"); a(f"s_mov_b32 s7, 4"); a(f"s_mov_b32 s61, 8")
    a(f"s_mul_i32 s15, s81, 160")
    a(f"s_sub_u32 s15, s15, {160*16 - 16}")
    a(f"s_cmp_ge_u32 s81, 16")
    a(f"s_cmov_b32 s83, s15"); a(f"s_cmovk_i32 s6, 80"); a(f"s_cmov_b32 s7, 40"); a(f"s_cmov_b32 s61, 4")
    a(f"s_lshl_b32 s15, s81, 5")
    a(f"s_sub_u32 s15, s15, 640")
    a(f"s_cmp_ge_u32 s81, 20")
    a(f"s_cmov_b32 s83, s15"); a(f"s_cmov_b32 s6, 8"); a(f"s_cmov_b32 s7, 4"); a(f"s_cmov_b32 s61, 16")
    a(f"s_cselect_b32 s44, s8, s4")
    a(f"s_cselect_b32 s45, s9, s5")
    sel(a, 46, 768*1280, 640*1280)
    a(f"s_and_b32 s45, s45, 0xffff")
    a(f"s_mov_b32 s47, 0x00020000")
    a(f"v_bfe_u32 v{WT+2}, v2, 2, 2")
    a(f"v_bfe_u32 v{WT+4}, v2, 4, 1")
    a(f"v_mul_lo_u32 v{WT+4}, v{WT+4}, s61")
    a(f"v_add_u32 v{WT+3}, v{WT+2}, v{WT+4}")
    a(f"v_mul_lo_u32 v{WT+4}, v4, s7")
    a(f"v_add3_u32 v{WT+3}, v{WT+3}, v{WT+4}, s83")
    a(f"s_movk_i32 s15, 1280")
    a(f"v_mul_lo_u32 v{WT+3}, v{WT+3}, s15")
    a(f"v_and_b32 v{WT+4}, 3, v2")
    a(f"v_lshl_add_u32 v{WT+3}, v{WT+4}, 4, v{WT+3}")
    a(f"s_lshl_b32 s71, s82, 6")
    a(f"s_mul_i32 s15, s6, 1280")
    a(f"s_add_u32 s72, s71, s15")
    a(f"s_sub_u32 s72, s72, 1024")
    a("s_add_u32 s73, s66, 4096")
    a(f"s_mov_b32 m0, s73")
    a(f"s_nop 0")
    a(f"buffer_load_dwordx4 v{WT+3}, s[44:47], s71 offen lds")
    a(f"buffer_load_dwordx4 v{WT+3}, s[44:47], s72 offen offset:1024 lds")
    a("s_waitcnt vmcnt(13)")
    a("s_barrier")
    trace(a, 250, 79)
    issue_kv()
    for o in w_ops(): a(o)
    a("s_lshl_b32 s15, s70, 8")
    a(f"s_add_u32 s71, s15, {WS_CNT}")
    a("v_lshlrev_b32 v11, 2, v2")
    a("s_mov_b32 s72, 0")
    a.label("K2G_poll")
    a("buffer_load_dword v10, v11, s[24:27], s71 offen sc1")
    a("s_add_u32 s72, s72, 1")
    a("s_waitcnt vmcnt(0)")
    a("v_cmp_ne_u32 vcc, 1, v10")
    a("s_cbranch_vccz K2G_ready")
    a("s_cmp_lt_u32 s72, 400")
    a("s_cbranch_scc0 K2G_self")
    a("s_sleep 4")
    a("s_branch K2G_poll")
    a.label("K2G_ready")
    trace(a, 250, 79)
    for j in range(3):
        for o in z_ops(j): a(o)
    a("v_bfe_u32 v11, v2, 2, 2")
    a(f"v_lshl_add_u32 v10, v5, 3, v11")
    a(f"v_lshlrev_b32 v10, 6, v10")
    a(f"v_and_b32 v{WT+7}, 3, v2")
    a(f"v_lshl_add_u32 v10, v{WT+7}, 3, v10")
    a(f"v_add_u32 v10, s73, v10")
    for nn in range(2):
        for e in range(2):
            a(f"ds_read_b64_tr_b16 {v(WT+4*nn+2*e,2)}, v10 offset:{256*e+32*nn}")
    a(f"s_lshl_b32 s15, s82, 1")
    a(f"s_mul_i32 s15, s15, 44")
    a(f"s_add_u32 s15, s15, s81")
    a(f"s_lshl_b32 s15, s15, 10")
    a(f"s_add_u32 s71, s15, {WS_WF}")
    a(f"s_add_u32 s72, s71, {44*1024}")
    a(f"s_waitcnt lgkmcnt(0)")
    a(f"buffer_store_dwordx4 {v(WT,4)}, v{VL}, s[24:27], s71 offen")
    a(f"buffer_store_dwordx4 {v(WT+4,4)}, v{VL}, s[24:27], s72 offen")
    a("s_barrier")
    issue_kv()
    for o in w_ops(): a(o)
    a(f"s_mov_b32 s74, {D0}")
    def reads(j):
        return [f"ds_read_b128 {v(BF[j][t],4)}, v{BA+(t>>1)} offset:{8192*j + 2048*(t&1)}" for t in range(4)]
    def stage(kvw, first_younger):
        for ins in reads(0) + reads(1) + reads(2): a(ins)
        kvw = list(kvw)
        n0 = (len(kvw) + 1) // 2
        parts = [kvw[:n0], kvw[n0:], []]
        for j in range(3):
            prev_after = [len(parts[1]) + 6, 3, 0][j]
            cur_before = [0, len(parts[0]) + 3, len(parts[0]) + len(parts[1]) + 6][j]
            a(f"s_waitcnt vmcnt({prev_after + cur_before}) lgkmcnt({4*(2-j)})")
            todo = list(parts[j])
            for t in range(4):
                for ft in range(3):
                    if not os.environ.get("K2_NOGMFMA"):
                        a(f"v_mfma_f32_16x16x32_bf16 {v(acc(t,ft),4)}, {v(AF[j][ft],4)}, {v(BF[j][t],4)}, {v(acc(t,ft),4)}")
                    if todo and (t*3+ft) % 2 == 1: a(todo.pop(0))
            assert not todo
            for o in z_ops(j): a(o)
        a("s_add_u32 s76, s76, 1")
        a("s_cmp_eq_u32 s76, 3")
        a("s_cselect_b32 s15, s78, s77")
        a("s_cmov_b32 s76, 0")
        for r_ in (BA, BA+1): a(f"v_add_u32 v{r_}, s15, v{r_}")
    a("s_waitcnt vmcnt(9)")
    a.label("K2G_stage")
    trace(a, 250, 79)
    a("s_barrier")
    trace(a, 250, 79)
    stage(kv_ops() + w_ops(), 0)
    a("s_add_u32 s74, s74, 1")
    a("s_cmp_lt_u32 s74, 15")
    a("s_cbranch_scc1 K2G_stage")
    prof_mark(a, 0)
    a("s_setprio 1")
    a(f"v_add_u32 v10, s66, v{VL}")
    a("s_xor_b32 s15, s12, 1")
    a("s_mul_i32 s15, s15, 6144")
    a(f"s_add_u32 s15, s15, {NSCR}")
    a(f"v_add_u32 v11, s15, v{VL}")
    a("s_nop 4")
    for n in range(6):
        a(f"ds_write_b128 v10, {v(ACC+24+4*n,4)} offset:{1024*n}")
    a("s_waitcnt vmcnt(0) lgkmcnt(0)")
    a("s_barrier")
    PB = BF[0][0]
    for n in range(6):
        a(f"ds_read_b128 {v(PB+4*n,4)}, v11 offset:{1024*n}")
    prof_mark(a, 1)
    code_touch(a, "k3_kernel", 12, 8, 249)
    P = BF[2][0]
    a("s_waitcnt lgkmcnt(0)")
    for tt in range(2):
        a(f"v_lshlrev_b32 v{BS+tt}, 16, v{BS+tt}")
    for tt in range(2):
        for ft in range(3):
            A = acc(tt, ft); Z = Z1 + (tt*3+ft)*2; Q = PB + (tt*3+ft)*4
            for j in range(4): a(f"v_add_f32 v{A+j}, v{A+j}, v{BS+tt}")
            for j in range(4): a(f"v_add_f32 v{A+j}, v{A+j}, v{Q+j}")
            for j in range(2):
                a(f"v_lshlrev_b32 v8, 16, v{Z+j}")
                a(f"v_and_b32 v9, 0xffff0000, v{Z+j}")
                a(f"v_mul_f32 v{A+2*j}, v{A+2*j}, v8")
                a(f"v_mul_f32 v{A+2*j+1}, v{A+2*j+1}, v9")
                a(f"v_cvt_pk_bf16_f32 v{P+(tt*3+ft)*2+j}, v{A+2*j}, v{A+2*j+1}")
    a("s_mul_i32 s61, s70, 3")
    a("s_mul_i32 s62, s60, 88")
    for ft in range(3):
        a(f"s_add_u32 s15, s61, {ft}")
        a("s_and_b32 s58, s15, 1")
        a("s_lshl_b32 s58, s58, 3")
        a("s_lshr_b32 s15, s15, 1")
        a("s_add_u32 s15, s15, s62")
        a("s_lshl_b32 s15, s15, 10")
        a("s_add_u32 s15, s15, s58")
        a(f"s_add_u32 s59, s15, {WS_ACT + 20*1024}")
        a(f"buffer_store_dwordx2 {v(P+ft*2,2)}, v{VL}, s[24:27], s59 offen")
        a(f"s_add_u32 s59, s59, {ACT_T16}")
        a(f"buffer_store_dwordx2 {v(P+(3+ft)*2,2)}, v{VL}, s[24:27], s59 offen")
    trace_dump(a, 250, kidx, 24)
    prof_end(a, kidx, 24)
    a.label("K2G_self")
    a("s_mov_b32 s64, 0")
    a("s_mov_b32 s65, s70")
    a.label("K2G_self_loop")
    norm_load()
    a("s_waitcnt vmcnt(0)")
    norm_compute()
    a("s_add_u32 s64, s64, 1")
    a("s_cmp_lt_u32 s64, 64")
    a("s_cbranch_scc1 K2G_self_loop")
    a("s_waitcnt vmcnt(0)")
    a("s_branch K2G_ready")
```

```python
import sys, os
sys.path.insert(0, os.path.dirname(os.path.abspath(__file__)))
from asmlib import *
from layout import *
import k1
NAME = "parallel_sum__softmax_full_mha__mixer_gmlp__prompt"
def build(out, which=("k1", "k2", "k3")):
    ref = open(f"cdna_kernels/{NAME}.s.ref").read().split("\n")
    hdr = [l for l in ref if l.startswith(";") and "@launch" not in l and "Override" not in l and "grid=ceil" not in l]
    a = Asm()
    descs = []
    launches = []
    if "k1" in which:
        n = k1.gen_k1(a); descs.append(descriptor("k1_kernel", 256, 100)); launches.append(f"; @launch kernel=k1_kernel grid=(256,1,1) block=(512,1,1) lds={k1.K1_LDS}")
    if "kn" in which:
        import kn
        kn.gen_kn(a); descs.append(descriptor("kn_kernel", 64, 100)); launches.append(f"; @launch kernel=kn_kernel grid=(384,1,1) block=(256,1,1) lds=0")
    if "k2" in which:
        import k2
        k2.gen_k2(a, len(launches)); descs.append(descriptor("k2_kernel", 256, 100)); launches.append(f"; @launch kernel=k2_kernel grid=(256,1,1) block=(512,1,1) lds={k2.K2_LDS}")
    if "k3" in which:
        import k3
        nv, acc = k3.gen_k3(a, len(launches)); descs.append(descriptor("k3_kernel", nv, 100, acc)); launches.append(f"; @launch kernel=k3_kernel grid=(256,1,1) block=(256,1,1) lds={k3.K3_LDS}")
    dg = os.environ.get("DIAG")
    if dg:
        import kdiag
        geo = {0: (256, 8), 1: (256, 8), 2: (256, 4)}
        def pe(t):
            if t == "none": return None
            k = int(t[0]); return (k, "start" if t[1] == "s" else "end") + geo[k]
        A, B = dg.split(",")
        kdiag.gen_diag(a, pe(A), pe(B)); descs.append(descriptor("dg_kernel", 32, 48)); launches.append("; @launch kernel=dg_kernel grid=(1,1,1) block=(64,1,1) lds=0")
    txt = "\n".join(hdr) + "\n" + "\n".join(launches) + "\n"
    txt += '.amdgcn_target "amdgcn-amd-amdhsa--gfx950"\n.text\n'
    txt += a.text()
    txt += '.section .rodata,"a"\n' + "".join(descs)
    open(out, "w").write(txt)
if __name__ == "__main__":
    out = sys.argv[1] if len(sys.argv) > 1 else f"cdna_kernels/{NAME}.s"
    which = sys.argv[2].split(",") if len(sys.argv) > 2 else ("k1", "k2", "k3")
    build(out, which)
```

```python
class Asm:
    def __init__(self):
        self.L = []
        self._uid = 0
    def __call__(self, s):
        for line in s.split("\n"):
            line = line.strip()
            if line:
                self.L.append("    " + line)
    def label(self, l):
        self.L.append(l + ":")
    def raw(self, s):
        self.L.append(s)
    def uid(self, p="L"):
        self._uid += 1
        return f"{p}_{self._uid}"
    def text(self):
        return "\n".join(self.L) + "\n"

def v(i, n=1):
    return f"v{i}" if n == 1 else f"v[{i}:{i+n-1}]"
def s(i, n=1):
    return f"s{i}" if n == 1 else f"s[{i}:{i+n-1}]"

class Regs:
    def __init__(self, start, limit):
        self.n = start; self.limit = limit; self.names = {}
    def alloc(self, name, cnt=1, align=1):
        if cnt >= 2 and align < 2: align = 2
        self.n = (self.n + align - 1) // align * align
        r = self.n
        self.n += cnt
        assert self.n <= self.limit, f"out of registers at {name}: {self.n}"
        self.names[name] = (r, cnt)
        return r

def srd(a, d, lo, hi, nbytes):
    a(f"s_mov_b32 s{d}, s{lo}")
    a(f"s_and_b32 s{d+1}, s{hi}, 0xffff")
    a(f"s_mov_b32 s{d+2}, {nbytes}")
    a(f"s_mov_b32 s{d+3}, 0x00020000")

def kernel_begin(a, name):
    a.raw(f".globl {name}")
    a.raw(".p2align 8")
    a.raw(f".type {name},@function")
    a.label(name)

def descriptor(name, vgpr, sgpr=102, accum=None):
    if accum is None: accum = (vgpr + 3) // 4 * 4
    return f""".p2align 6
.amdhsa_kernel {name}
  .amdhsa_next_free_vgpr {vgpr}
  .amdhsa_next_free_sgpr {sgpr}
  .amdhsa_accum_offset {accum}
  .amdhsa_group_segment_fixed_size 0
  .amdhsa_kernarg_size 88
  .amdhsa_user_sgpr_count 2
  .amdhsa_user_sgpr_kernarg_segment_ptr 1
  .amdhsa_system_sgpr_workgroup_id_x 1
.end_amdhsa_kernel
"""
import struct
def f32bits(x):
    return struct.unpack("<I", struct.pack("<f", x))[0]
def fhex(x):
    return f"0x{f32bits(x):08x}"

def sel(a, d, A, B):
    a(f"s_mov_b32 s{d}, {B}")
    a(f"s_cmov_b32 s{d}, {A}")

import os
PROFILE = bool(int(os.environ.get("PROFILE", "0")))
WS_PROF = 0x1A00000
def prof_begin(a):
    if not PROFILE: return
    a("s_memrealtime s[84:85]")
    a("s_memtime s[86:87]")
def prof_mark(a, i):
    if not PROFILE: return
    a(f"s_memtime s[{88+2*i}:{89+2*i}]")
def prof_end(a, kidx, srdws, wave_sgpr_expr=None):
    if PROFILE:
        a("s_waitcnt vmcnt(0) lgkmcnt(0)")
        a("s_memrealtime s[80:81]")
        a("s_memtime s[82:83]")
        a("s_mov_b64 exec, 1")
        a("s_waitcnt lgkmcnt(0)")
        a("v_mov_b32 v4, s84")
        a("v_mov_b32 v5, s80")
        a("s_sub_u32 s82, s82, s86")
        a("v_mov_b32 v6, s82")
        a("s_sub_u32 s88, s88, s86")
        a("v_mov_b32 v7, s88")
        a("s_sub_u32 s90, s90, s86")
        a("s_sub_u32 s92, s92, s86")
        a("s_sub_u32 s94, s94, s86")
        a("v_mov_b32 v8, s90")
        a("v_mov_b32 v9, s92")
        a("v_mov_b32 v10, s94")
        a("v_mov_b32 v11, 0")
        a("v_lshrrev_b32 v3, 6, v0")
        a("v_lshlrev_b32 v3, 5, v3")
        a("s_lshl_b32 s80, s2, 8")
        a(f"s_add_u32 s80, s80, {WS_PROF + kidx*0x20000}")
        a(f"buffer_store_dwordx4 v[4:7], v3, s[{srdws}:{srdws+3}], s80 offen")
        a(f"buffer_store_dwordx4 v[8:11], v3, s[{srdws}:{srdws+3}], s80 offen offset:16")
    a("s_endpgm")

TRACE = bool(int(os.environ.get("TRACE", "0")))
def trace_init(a, vreg, sidx):
    if not TRACE: return
    a(f"v_mov_b32 v{vreg}, 0")
    a(f"s_mov_b32 s{sidx}, 0")
def trace(a, vreg, sidx):
    if not TRACE: return
    a("s_memtime s[96:97]")
    a(f"s_mov_b32 m0, s{sidx}")
    a("s_waitcnt lgkmcnt(0)")
    a(f"v_writelane_b32 v{vreg}, s96, m0")
    a(f"s_addk_i32 s{sidx}, 1")
def trace_dump(a, vreg, kidx, srdws):
    if not TRACE: return
    a(f"v_subrev_u32 v{vreg}, s86, v{vreg}")
    a("v_lshlrev_b32 v3, 2, v0")
    a("s_lshl_b32 s80, s2, 11")
    a(f"s_add_u32 s80, s80, {WS_PROF + 0x100000 + kidx*0x80000}")
    a(f"buffer_store_dword v{vreg}, v3, s[{srdws}:{srdws+3}], s80 offen")

def code_touch(a, target, swave, vtmp, vdst, sp=98, nbytes=8192):
    if os.environ.get("NOTOUCH"): return
    l = a.uid("ct")
    a(f"s_getpc_b64 s[{sp}:{sp+1}]")
    a.label(l)
    a(f"s_add_u32 s{sp}, s{sp}, {target}-{l}")
    a(f"s_addc_u32 s{sp+1}, s{sp+1}, 0")
    a(f"v_lshlrev_b32 v{vtmp}, 7, v2")
    a(f"s_lshl_b32 s15, s{swave}, 13")
    a(f"v_add_u32 v{vtmp}, s15, v{vtmp}")
    a(f"v_min_u32 v{vtmp}, CODE_END-{target}-4, v{vtmp}")
    a(f"global_load_dword v{vdst}, v{vtmp}, s[{sp}:{sp+1}]")
```

```python
import sys, os
sys.path.insert(0, os.path.dirname(os.path.abspath(__file__)))
from asmlib import *
from layout import *
import importlib
k1 = importlib.import_module(os.environ.get('K1MOD', 'k1'))
NAME = "parallel_sum__softmax_full_mha__mixer_gmlp__prompt"
def build(out, which=("k1", "k2")):
    ref = open(f"cdna_kernels/{NAME}.s.ref").read().split("\n")
    hdr = [l for l in ref if l.startswith(";") and "@launch" not in l and "Override" not in l and "grid=ceil" not in l]
    a = Asm()
    descs = []
    launches = []
    if "k1" in which:
        n = k1.gen_k1(a); descs.append(descriptor("k1_kernel", 256, 102)); launches.append(f"; @launch kernel=k1_kernel grid=(256,1,1) block=(512,1,1) lds={k1.K1_LDS}")
    if "kn" in which:
        import kn
        kn.gen_kn(a); descs.append(descriptor("kn_kernel", 64, 102)); launches.append(f"; @launch kernel=kn_kernel grid=(384,1,1) block=(256,1,1) lds=0")
    if "k2" in which:
        k2 = importlib.import_module(os.environ.get('K2MOD', 'k2'))
        k2.gen_k2(a, len(launches)); descs.append(descriptor("k2_kernel", 256, 102)); launches.append(f"; @launch kernel=k2_kernel grid=(256,1,1) block=(512,1,1) lds={k2.K2_LDS}")
    if "k3" in which:
        import k3
        nv, acc = k3.gen_k3(a, len(launches)); descs.append(descriptor("k3_kernel", nv, 102, acc)); launches.append(f"; @launch kernel=k3_kernel grid=(256,1,1) block=(256,1,1) lds={k3.K3_LDS}")
    dg = os.environ.get("DIAG")
    if dg:
        import kdiag
        geo = {0: (256, 8), 1: (256, 8), 2: (256, 4)}
        def pe(t):
            if t == "none": return None
            k = int(t[0]); return (k, "start" if t[1] == "s" else "end") + geo[k]
        A, B = dg.split(",")
        kdiag.gen_diag(a, pe(A), pe(B)); descs.append(descriptor("dg_kernel", 32, 48)); launches.append("; @launch kernel=dg_kernel grid=(1,1,1) block=(64,1,1) lds=0")
    txt = "\n".join(hdr) + "\n" + "\n".join(launches) + "\n"
    txt += '.amdgcn_target "amdgcn-amd-amdhsa--gfx950"\n.text\n'
    txt += a.text()
    txt += "CODE_END:\n    s_endpgm\n"
    txt += '.section .rodata,"a"\n' + "".join(descs)
    open(out, "w").write(txt)
if __name__ == "__main__":
    out = sys.argv[1] if len(sys.argv) > 1 else f"cdna_kernels/{NAME}.s"
    which = sys.argv[2].split(",") if len(sys.argv) > 2 else ("k1", "k2")
    build(out, which)
```

```python
from asmlib import *
from layout import *
import math, os

XBUF = [0, 16384, 32768]
WBUF = [49152, 49152 + 32768, 49152 + 65536]
STAT = 147456
K1_LDS = STAT + 8192

STP = os.environ.get("K1_ST", "")
def gen_k1(a):
    kernel_begin(a, "k1_kernel")
    a("s_cmp_ge_u32 s2, 256")
    a("s_cbranch_scc1 K1_exit")
    prof_begin(a)
    a("s_load_dwordx4 s[4:7], s[0:1], 0")
    a("s_load_dwordx2 s[8:9], s[0:1], 32")
    a("s_load_dwordx2 s[10:11], s[0:1], 80")
    a("v_lshrrev_b32 v1, 6, v0")
    a("v_and_b32 v2, 63, v0")
    a("v_readfirstlane_b32 s12, v1")
    a("s_and_b32 s15, s2, 1")
    a("s_lshl_b32 s13, s15, 3")
    a("s_bfe_u32 s15, s2, 0x30003")
    a("s_add_u32 s13, s13, s15")
    a("s_bfe_u32 s14, s2, 0x20001")
    a("s_lshl_b32 s14, s14, 2")
    a("s_lshr_b32 s15, s2, 6")
    a("s_add_u32 s14, s14, s15")
    a("s_waitcnt lgkmcnt(0)")
    prof_mark(a, 3)
    srd(a, 16, 4, 5, 2048 * 640 * 2)
    srd(a, 24, 10, 11, WS_SIZE)
    a("s_cmp_lt_u32 s14, 8")
    a("s_cselect_b32 s20, s6, s8")
    a("s_cselect_b32 s21, s7, s9")
    a("s_and_b32 s21, s21, 0xffff")
    a("s_cmp_lt_u32 s14, 8")
    sel(a, 22, 640*1920*2, 640*1536*2)
    a("s_mov_b32 s23, 0x00020000")
    sel(a, 28, 3840, 3072)
    a("s_mul_i32 s29, s14, 480")
    a("s_and_b32 s30, s29, 63")
    a("s_and_b32 s29, s29, 0xffffffc0")
    a("s_sub_u32 s15, s14, 8")
    a("s_mul_i32 s15, s15, 384")
    a("s_cmp_lt_u32 s14, 8")
    a("s_cselect_b32 s29, s29, s15")
    a("s_cselect_b32 s30, s30, 0")
    a("s_cmp_ge_u32 s12, 4")
    a("s_cbranch_scc0 K1_compute")
    a("s_sub_u32 s12, s12, 4")
    a("s_lshl_b32 s15, s2, 2")
    a("s_add_u32 s15, s15, s12")
    a("s_mul_i32 s15, s15, 20")
    a(f"s_add_u32 s15, s15, {WS_CNT}")
    a("v_mov_b32 v3, 0")
    a("v_lshlrev_b32 v4, 2, v2")
    a("s_mov_b64 exec, 31")
    a("buffer_store_dword v3, v4, s[24:27], s15 offen")
    a("s_mov_b64 exec, -1")
    VX, VW = 4, 8
    a("v_lshrrev_b32 v3, 3, v2")
    a("v_lshrrev_b32 v12, 4, v2")
    a("v_and_b32 v13, 7, v2")
    a("v_lshrrev_b32 v14, 5, v2")
    a("v_and_b32 v15, 31, v2")
    a("s_movk_i32 s15, 1280")
    for jj in range(4):
        a(f"v_add_u32 v16, {8*jj}, v3")
        a(f"v_mul_lo_u32 v16, v16, s15")
        a(f"v_add_u32 v17, {4*jj}, v12")
        a(f"v_and_b32 v17, 7, v17")
        a(f"v_xor_b32 v17, v17, v13")
        a(f"v_lshl_add_u32 v16, v17, 4, v16")
        a(f"v_subrev_u32 v{VX+jj}, {1024*jj}, v16")
        a(f"v_add_u32 v16, {2*jj}, v14")
        a(f"v_and_b32 v17, 3, v16")
        a(f"v_mul_lo_u32 v16, v16, s28")
        a(f"v_lshlrev_b32 v17, 2, v17")
        a(f"v_xor_b32 v17, v17, v15")
        a(f"v_lshl_add_u32 v16, v17, 4, v16")
        a(f"v_subrev_u32 v{VW+jj}, {1024*jj}, v16")
    a("s_lshl_b32 s31, s13, 7")
    a("s_lshl_b32 s15, s12, 5")
    a("s_add_u32 s31, s31, s15")
    a("s_mul_i32 s31, s31, 1280")
    a("s_lshl_b32 s15, s12, 4")
    a("s_mul_i32 s32, s15, s28")
    a("s_add_u32 s32, s32, s29")
    a("s_lshl_b32 s33, s28, 3")
    a("s_lshl_b32 s34, s28, 6")
    a("s_lshl_b32 s35, s12, 12")
    a("s_lshl_b32 s36, s12, 13")
    a(f"s_add_u32 s36, s36, {WBUF[0]}")
    a("s_mov_b32 s37, 0")
    def issue_ops():
        if os.environ.get("K1_NODMA"): return []
        o = []
        for jj in range(4):
            o.append(("s_mov_b32 m0, s35\ns_add_u32 s38, s32, s33\n" if jj == 0 else "") + f"buffer_load_dwordx4 v{VX+jj}, s[16:19], s31 offen offset:{1024*jj} lds")
        for jj in range(4):
            o.append(("s_mov_b32 m0, s36\ns_add_u32 s31, s31, 128\n" if jj == 0 else "") + f"buffer_load_dwordx4 v{VW+jj}, s[20:23], s32 offen offset:{1024*jj} lds")
        for jj in range(4):
            o.append(("s_add_u32 m0, s36, 4096\ns_add_u32 s32, s32, s34\n" if jj == 0 else "") + f"buffer_load_dwordx4 v{VW+jj}, s[20:23], s38 offen offset:{1024*jj} lds")
        o[-1] += "\ns_add_u32 s37, s37, 1\ns_cmp_eq_u32 s37, 3\ns_movk_i32 s39, 0x4000\ns_cmovk_i32 s39, 0x8000\ns_cmov_b32 s37, 0\ns_add_u32 s35, s35, s39\ns_lshl_b32 s39, s39, 1\ns_add_u32 s36, s36, s39"
        return o
    def issue():
        for o in issue_ops(): a(o)
    for i in range(16): a(f"v_mov_b32 v{32+i}, 0")
    a("v_lshl_add_u32 v20, v2, 4, s35")
    a("s_mov_b32 s41, 0")
    def xstats(dma):
        dma = list(dma)
        for jj in range(4):
            a(f"ds_read_b128 v[{48+4*jj}:{51+4*jj}], v20 offset:{1024*jj}")
        a("s_add_u32 s41, s41, 1")
        a("s_cmp_eq_u32 s41, 3")
        a("s_movk_i32 s42, 0x4000")
        a("s_cmovk_i32 s42, 0x8000")
        a("s_cmov_b32 s41, 0")
        a("v_add_u32 v20, s42, v20")
        for jj in range(4):
            if dma: a(dma.pop(0))
            a(f"s_waitcnt lgkmcnt({3-jj})")
            for i in range(4):
                a(f"v_lshlrev_b32 v{64+2*i}, 16, v{48+4*jj+i}")
                a(f"v_and_b32 v{65+2*i}, 0xffff0000, v{48+4*jj+i}")
            for i in range(4):
                if dma and i % 2 == 0: a(dma.pop(0))
                a(f"v_add_f32 v{32+4*jj}, v{32+4*jj}, v{64+2*i}")
                a(f"v_add_f32 v{33+4*jj}, v{33+4*jj}, v{65+2*i}")
                a(f"v_fmac_f32 v{34+4*jj}, v{64+2*i}, v{64+2*i}")
                a(f"v_fmac_f32 v{35+4*jj}, v{65+2*i}, v{65+2*i}")
        assert not dma
    issue()
    issue()
    prof_mark(a, 0)
    a("s_mov_b32 s40, 0")
    a.label("K1_ld_loop")
    a("s_waitcnt vmcnt(12)")
    a("s_barrier")
    xstats(issue_ops())
    a("s_add_u32 s40, s40, 1")
    a("s_cmp_lt_u32 s40, 8")
    a("s_cbranch_scc1 K1_ld_loop")
    a("s_waitcnt vmcnt(12)")
    a.label("K1_ld_tail")
    a("s_barrier")
    xstats([])
    a("s_add_u32 s40, s40, 1")
    a("s_waitcnt vmcnt(0)")
    a("s_cmp_lt_u32 s40, 10")
    a("s_cbranch_scc1 K1_ld_tail")
    code_touch(a, "k2_kernel", 12, 24, 25)
    for jj in range(4):
        a(f"v_add_f32 v{48+2*jj}, v{32+4*jj}, v{33+4*jj}")
        a(f"v_add_f32 v{49+2*jj}, v{34+4*jj}, v{35+4*jj}")
    for dpp in ("quad_perm:[1,0,3,2]", "quad_perm:[2,3,0,1]", "row_half_mirror"):
        a("s_nop 0")
        for i in range(8):
            a(f"v_add_f32_dpp v{48+i}, v{48+i}, v{48+i} {dpp} row_mask:0xf bank_mask:0xf")
    a("s_lshl_b32 s15, s12, 8")
    a(f"s_add_u32 s15, s15, {STAT}")
    a("v_lshl_add_u32 v21, v3, 3, s15")
    for jj in range(4):
        a(f"ds_write_b64 v21, v[{48+2*jj}:{49+2*jj}] offset:{64*jj}")
    a("s_waitcnt lgkmcnt(0)")
    a("s_barrier")
    prof_end(a, 0, 24)

    a.label("K1_compute")
    R = Regs(3, 256)
    T = [R.alloc(f"t{i}") for i in range(9)]
    XA = R.alloc("xa", 4)
    WE = R.alloc("we", 4)
    WO = R.alloc("wo", 4)
    SX = R.alloc("sx", 4, 4)
    CS = R.alloc("cs", 16, 4)
    SEL = R.alloc("sel", 4, 4)
    ONES = R.alloc("ones")
    XF = [[R.alloc(f"xf{b}{i}", 4, 4) for i in range(2)] for b in range(2)]
    WF = [[R.alloc(f"wf{b}{i}", 4, 4) for i in range(4)] for b in range(2)]
    ACC = R.alloc("acc", 128, 4)
    EX = R.alloc("ex", 28, 4)
    def acc(ai, t): return ACC + (ai * 4 + t) * 16
    code_touch(a, "K1_loop_q", 12, 3, 255)
    a("s_lshr_b32 s31, s12, 1")
    a("s_and_b32 s32, s12, 1")
    a("s_xor_b32 s33, s31, s32")
    a("v_and_b32 v3, 31, v2")
    a("v_lshrrev_b32 v4, 5, v2")
    a("v_bfe_u32 v5, v2, 1, 3")
    a("s_lshl_b32 s15, s31, 13")
    a("v_lshl_add_u32 v6, v3, 7, s15")
    a("v_xor_b32 v5, v5, v4")
    a("s_lshl_b32 s15, s33, 1")
    a("v_xor_b32 v5, s15, v5")
    for u in range(4):
        a(f"v_xor_b32 v7, {2*u}, v5")
        a(f"v_lshl_add_u32 v{XA+u}, v7, 4, v6")
    a("s_cmp_lt_u32 s14, 8")
    sel(a, 15, 240, 192)
    a("s_mul_i32 s15, s15, s32")
    a("s_add_u32 s15, s15, s30")
    a("v_bfe_u32 v5, v2, 2, 2")
    a("v_and_b32 v6, 3, v2")
    a("v_lshlrev_b32 v6, 3, v6")
    a("v_bfe_u32 v7, v2, 4, 1")
    a("v_lshl_add_u32 v6, v7, 5, v6")
    a("v_add_u32 v6, s15, v6")
    a("s_add_u32 s38, s15, 232")
    a("v_lshl_add_u32 v7, v4, 3, v5")
    a("v_lshlrev_b32 v7, 9, v7")
    a(f"v_add_u32 v7, {WBUF[0]}, v7")
    a("s_lshl_b32 s15, s33, 13")
    for t in range(4):
        a(f"v_add_u32 v8, {64*t}, v6")
        if t == 3: a("v_min_u32 v8, s38, v8")
        a("v_lshrrev_b32 v9, 6, v8")
        a("v_xor_b32 v9, v9, v5")
        a("v_and_b32 v8, 63, v8")
        a("v_lshl_add_u32 v8, v9, 6, v8")
        a("v_add_u32 v8, v8, v7")
        a(f"v_add_u32 v{WE+t}, s15, v8")
        a(f"v_subrev_u32 v{WO+t}, s15, v8")
    a(f"v_mov_b32 v{ONES}, 0x3f803f80")
    for i in range(16):
        a(f"v_mov_b32 v{CS+i}, 0")
    a("v_bfe_u32 v8, v2, 4, 1")
    a("v_and_b32 v9, 15, v2")
    a("v_cmp_eq_u32 vcc, v8, v9")
    a("s_nop 1")
    a(f"v_cndmask_b32 v{SEL}, 0, v{ONES}, vcc")
    for i in range(1, 4): a(f"v_mov_b32 v{SEL+i}, v{SEL}")
    for i in range(128):
        a(f"v_mov_b32 v{ACC+i}, 0")
    a("s_mov_b32 s34, 0")
    a("s_mov_b32 s35, 0")

    def reads(u, b, NT):
        W = WE if u % 2 == 0 else WO
        r = [f"ds_read_b128 {v(XF[b][0],4)}, v{XA+u}"]
        def wr(t):
            return [f"ds_read_b64_tr_b16 {v(WF[b][t],2)}, v{W+t} offset:{u*8192}",
                    f"ds_read_b64_tr_b16 {v(WF[b][t]+2,2)}, v{W+t} offset:{u*8192+2048}"]
        r += wr(0) + wr(1)
        r += [f"ds_read_b128 {v(XF[b][1],4)}, v{XA+u} offset:4096"]
        for t in range(2, NT): r += wr(t)
        return r

    def mainloop(NT, tag):
        a("s_barrier")
        prof_mark(a, 0)
        for ins in reads(0, 0, NT): a(ins)
        a.label(f"K1_loop_{tag}")
        a("s_add_u32 s35, s35, 1")
        a("s_cmp_eq_u32 s35, 3")
        a("s_movk_i32 s36, 0x4000")
        a("s_cmovk_i32 s36, 0x8000")
        a("s_cmov_b32 s35, 0")
        a("s_lshl_b32 s37, s36, 1")
        for u in range(4):
            b = u & 1
            order = [(0,0),(1,0),(0,1),(1,1)] + ([(2,0),(3,0),(2,1),(3,1)] if NT == 4 else [(2,0),(2,1)])
            rd = reads((u + 1) & 3, b ^ 1, NT)
            st = []
            if u % 2 == 0:
                st = [f"v_mfma_f32_16x16x32_bf16 {v(CS+4*t,4)}, {v(SEL,4)}, {v(WF[b][t],4)}, {v(CS+4*t,4)}" for t in range(NT)]
            if os.environ.get("K1_NOSTAT"): st = []
            if os.environ.get("K1_NORD"): rd = []
            if os.environ.get("K1_NOTR"): rd = [x for x in rd if "tr_b16" not in x]
            if os.environ.get("K1_NOB128"): rd = [x for x in rd if "b128" not in x]
            upd = []
            if u == 0: upd = [f"v_add_u32 v{XA+0}, s36, v{XA+0}", f"v_add_u32 v{XA+1}, s36, v{XA+1}"]
            if u == 1: upd = [f"v_add_u32 v{XA+2}, s36, v{XA+2}"] + [f"v_add_u32 v{WE+t}, s37, v{WE+t}" for t in range(NT)]
            if u == 2: upd = [f"v_add_u32 v{XA+3}, s36, v{XA+3}"] + [f"v_add_u32 v{WO+t}, s37, v{WO+t}" for t in range(NT)]
            a("s_waitcnt lgkmcnt(0)")
            n = len(order)
            first_rd_gap = 1 if u == 3 else 0
            rdi = 0; sti = 0
            per_st = (len(st) + n - 1) // n
            for mi, (t, ai) in enumerate(order):
                a(f"v_mfma_f32_32x32x16_bf16 {v(acc(ai,t),16)}, {v(WF[b][t],4)}, {v(XF[b][ai],4)}, {v(acc(ai,t),16)}")
                if u == 3 and mi == 0:
                    a("s_barrier")
                if mi >= first_rd_gap:
                    for _ in range(2):
                        if rdi < len(rd):
                            a(rd[rdi]); rdi += 1
                if mi % 2 == 1 and sti < len(st):
                    a(st[sti]); sti += 1
                if rdi >= len(rd) and upd and mi >= n - 2:
                    k = len(upd) if mi == n - 1 else (len(upd) + 1) // 2
                    for ins in upd[:k]: a(ins)
                    upd = upd[k:]
            assert rdi == len(rd) and sti == len(st) and not upd, (rdi, len(rd), sti, len(st), upd)
        a("s_add_u32 s34, s34, 1")
        a("s_cmp_lt_u32 s34, 10")
        a(f"s_cbranch_scc1 K1_loop_{tag}")

    RHO = [EX + 0, EX + 2]
    def stats_epilogue(NT):
        prof_mark(a, 1)
        CSA = STAT + 2048
        E = XF[0][0]
        a("s_lshl_b32 s15, s12, 9")
        a(f"s_add_u32 s15, s15, {CSA}")
        a("v_lshl_add_u32 v5, v2, 2, s15")
        a("v_and_b32 v3, 31, v2")
        a("v_lshl_add_u32 v6, v3, 2, s15")
        a("v_xor_b32 v7, 0x400, v6")
        a("s_lshl_b32 s15, s31, 9")
        a(f"s_add_u32 s15, s15, {STAT}")
        a("v_lshl_add_u32 v8, v3, 3, s15")
        a("s_waitcnt vmcnt(0) lgkmcnt(0)")
        a(f"ds_read_b64 {v(SX,2)}, v8")
        a(f"ds_read_b64 {v(SX+2,2)}, v8 offset:256")
        a("s_mov_b64 exec, 0xffff")
        for t in range(NT):
            a(f"ds_write2_b32 v5, v{CS+4*t}, v{CS+4*t+1} offset0:{32*t} offset1:{32*t+16}")
        a("s_mov_b64 exec, -1")
        a("s_waitcnt lgkmcnt(0)")
        a("s_barrier")
        for t in range(NT):
            a(f"ds_read_b32 v{E+12+t}, v6 offset:{128*t}")
            a(f"ds_read_b32 v{E+16+t}, v7 offset:{128*t}")
        BX = E + 24
        a("v_cmp_gt_u32 vcc, 32, v2")
        for ai in range(2):
            sx, sxx = SX + 2*ai, SX + 2*ai + 1
            a(f"v_mul_f32 v{sx}, {fhex(1.0/640)}, v{sx}")
            a(f"v_mul_f32 v{sxx}, {fhex(1.0/640)}, v{sxx}")
            a(f"v_fma_f32 v{sxx}, -v{sx}, v{sx}, v{sxx}")
            a(f"v_max_f32 v{sxx}, 0, v{sxx}")
            a(f"v_cvt_pk_bf16_f32 v{sxx}, v{sxx}, v{sxx}")
            a(f"v_and_b32 v{sxx}, 0xffff0000, v{sxx}")
            a(f"v_add_f32 v{sxx}, {fhex(1e-5)}, v{sxx}")
            a(f"v_cvt_pk_bf16_f32 v{sxx}, v{sxx}, v{sxx}")
            a(f"v_and_b32 v{sxx}, 0xffff0000, v{sxx}")
            a(f"v_sqrt_f32 v{sxx}, v{sxx}")
            a(f"v_cvt_pk_bf16_f32 v{sx}, -v{sx}, -v{sx}")
            a(f"v_cvt_pk_bf16_f32 v{sxx}, v{sxx}, v{sxx}")
            a(f"v_and_b32 v{sxx}, 0xffff0000, v{sxx}")
            a(f"v_rcp_f32 v{RHO[ai]}, v{sxx}")
            a(f"v_cndmask_b32 v{BX+2*ai}, 0, v{sx}, vcc")
            a(f"v_and_b32 v{BX+2*ai+1}, 0xffff, v{BX+2*ai}")
        a("s_waitcnt lgkmcnt(0)")
        AX = E + 28
        for t in range(NT):
            c = CS + t
            a(f"v_add_f32 v{c}, v{E+12+t}, v{E+16+t}")
            a(f"v_cvt_pk_bf16_f32 v3, v{c}, v{c}")
            a(f"v_and_b32 v3, 0xffff0000, v3")
            a(f"v_sub_f32 v3, v{c}, v3")
            a(f"v_cvt_pk_bf16_f32 v{AX+2*t}, v{c}, v3")
            a(f"v_and_b32 v4, 0xffff0000, v{AX+2*t}")
            a(f"v_sub_f32 v3, v3, v4")
            a(f"v_cvt_pk_bf16_f32 v{AX+2*t+1}, v3, 0")
        a("s_nop 1")
        for t in range(NT):
            for ai in range(2):
                a(f"v_mfma_f32_32x32x8_bf16 {v(acc(ai,t),16)}, {v(AX+2*t,2)}, {v(BX+2*ai,2)}, {v(acc(ai,t),16)}")

    a("s_cmp_lt_u32 s14, 8")
    a("s_cbranch_scc0 K1_z")
    mainloop(4, "q")
    stats_epilogue(4)
    a("v_lshlrev_b32 v5, 4, v2")
    a("v_xor_b32 v6, 64, v5")
    a("v_xor_b32 v7, 128, v5")
    a("s_mul_i32 s36, s14, 30")
    a("s_mul_i32 s15, s32, 15")
    a("s_add_u32 s36, s36, s15")
    a("s_lshl_b32 s37, s36, 5")
    a("s_lshl_b32 s15, s13, 1")
    a("s_add_u32 s15, s15, s31")
    a("s_add_u32 s37, s37, s15")
    a("s_lshl_b32 s37, s37, 10")
    RS = [EX + 4, EX + 6]
    ST = [EX + 8, EX + 12, EX + 16, EX + 20]
    for Q in range(15):
        t, q = Q // 4, Q % 4
        pp, U = Q // 5, Q % 5
        if U == 0:
            a(f"s_cmp_lt_u32 s36, {80 - 5*pp}")
            a(f"s_cselect_b32 s15, {fhex(QSCALE)}, 1.0")
            a(f"v_mul_f32 v{RS[0]}, s15, v{RHO[0]}")
            a(f"v_mul_f32 v{RS[1]}, s15, v{RHO[1]}")
            if Q == 0:
                a("s_nop 7")
        S = ST[Q % 4]
        for ai in range(2):
            A = acc(ai, t) + 4*q
            a(f"v_pk_mul_f32 {v(A,2)}, {v(A,2)}, {v(RS[ai],2)} op_sel_hi:[1,0]")
            a(f"v_pk_mul_f32 {v(A+2,2)}, {v(A+2,2)}, {v(RS[ai],2)} op_sel_hi:[1,0]")
        for ai in range(2):
            A = acc(ai, t) + 4*q
            a(f"v_cvt_pk_bf16_f32 v{S+2*ai}, v{A}, v{A+1}")
            a(f"v_cvt_pk_bf16_f32 v{S+2*ai+1}, v{A+2}, v{A+3}")
        a("s_nop 1")
        a(f"v_permlane32_swap_b32 v{S}, v{S+2}")
        a(f"v_permlane32_swap_b32 v{S+1}, v{S+3}")
        a(f"buffer_store_dwordx4 {v(S,4)}, v{5+SWZU[U]}, s[24:27], s37 offen{STP}")
        a("s_add_u32 s37, s37, 32768")
    prof_mark(a, 2)
    prof_end(a, 0, 24)

    a.label("K1_z")
    mainloop(3, "z")
    stats_epilogue(3)
    a("v_lshrrev_b32 v4, 5, v2")
    a("v_lshlrev_b32 v7, 2, v4")
    a("v_xor_b32 v7, v7, v2")
    a("v_lshlrev_b32 v5, 4, v7")
    a("v_xor_b32 v6, 0x480, v5")
    a("s_cmp_lt_u32 s14, 12")
    sel(a, 37, WS_Z1, WS_Z2R)
    a("s_lshl_b32 s36, s13, 2")
    a("s_lshl_b32 s15, s31, 1")
    a("s_add_u32 s36, s36, s15")
    a("s_mul_i32 s38, s36, 24")
    a("s_and_b32 s15, s14, 3")
    a("s_lshl_b32 s39, s15, 1")
    a("s_add_u32 s39, s39, s32")
    a("s_mul_i32 s15, s39, 3")
    a("s_add_u32 s38, s38, s15")
    a("s_lshl_b32 s38, s38, 11")
    a("s_add_u32 s37, s37, s38")
    c0 = -2.0 * math.sqrt(2.0 / math.pi) * math.log2(math.e)
    c1 = c0 * 0.044715
    K0, K1c, ONE = EX + 4, EX + 6, EX + 8
    a(f"v_mov_b32 v{K0}, {fhex(c0)}")
    a(f"v_mov_b32 v{K1c}, {fhex(c1)}")
    a(f"v_mov_b32 v{ONE}, 1.0")
    for i in range(4): a(f"v_mov_b32 v{SX+i}, 0")
    TM = XF[0][0]
    PK = [EX + 12, EX + 16, EX + 20, EX + 24]
    a("s_nop 4")
    cnt = 0
    for ai in range(2):
        for t in range(3):
            for u in range(2):
                A = acc(ai, t) + 8*u
                Tm = TM + (cnt % 2) * 8
                S = PK[cnt % 4]
                bc = "op_sel_hi:[1,0]"
                for i in range(4):
                    a(f"v_pk_mul_f32 {v(A+2*i,2)}, {v(A+2*i,2)}, {v(RHO[ai],2)} {bc}")
                for i in range(4):
                    a(f"v_pk_mul_f32 {v(Tm+2*i,2)}, {v(A+2*i,2)}, {v(A+2*i,2)}")
                for i in range(4):
                    a(f"v_pk_fma_f32 {v(Tm+2*i,2)}, {v(Tm+2*i,2)}, {v(K1c,2)}, {v(K0,2)} op_sel_hi:[1,0,0]")
                for i in range(4):
                    a(f"v_pk_mul_f32 {v(Tm+2*i,2)}, {v(Tm+2*i,2)}, {v(A+2*i,2)}")
                for i in range(8):
                    a(f"v_exp_f32 v{Tm+i}, v{Tm+i}")
                for i in range(4):
                    a(f"v_pk_add_f32 {v(Tm+2*i,2)}, {v(Tm+2*i,2)}, {v(ONE,2)} {bc}")
                for i in range(8):
                    a(f"v_rcp_f32 v{Tm+i}, v{Tm+i}")
                for i in range(4):
                    a(f"v_pk_mul_f32 {v(A+2*i,2)}, {v(A+2*i,2)}, {v(Tm+2*i,2)}")
                for i in range(4):
                    a(f"v_cvt_pk_bf16_f32 v{S+i}, v{A+2*i}, v{A+2*i+1}")
                a(f"buffer_store_dwordx4 {v(S,4)}, v{5+u}, s[24:27], s37 offen{STP}")
                for i in range(4):
                    a(f"v_dot2c_f32_bf16 v{SX+2*ai}, v{S+i}, v{ONES}")
                    a(f"v_dot2c_f32_bf16 v{SX+2*ai+1}, v{S+i}, v{S+i}")
                cnt += 1
            a(f"s_add_u32 s37, s37, {2048 if t < 2 else 24*2048 - 2*2048}")
    a("s_cmp_lt_u32 s14, 12")
    a("s_cbranch_scc1 K1_done")
    a("s_nop 2")
    a(f"v_permlane32_swap_b32 v{SX}, v{SX+2}")
    a(f"v_permlane32_swap_b32 v{SX+1}, v{SX+3}")
    a(f"v_add_f32 v{SX}, v{SX}, v{SX+2}")
    a(f"v_add_f32 v{SX+1}, v{SX+1}, v{SX+3}")
    a("v_and_b32 v3, 31, v2")
    a("v_lshlrev_b32 v3, 3, v3")
    a("v_lshl_add_u32 v3, v4, 11, v3")
    a("s_lshl_b32 s36, s36, 3")
    a("s_add_u32 s36, s36, s39")
    a("s_lshl_b32 s36, s36, 8")
    a(f"s_add_u32 s36, s36, {WS_ST}")
    a(f"buffer_store_dwordx2 {v(SX,2)}, v3, s[24:27], s36 offen")
    a.label("K1_done")
    prof_mark(a, 2)
    prof_end(a, 0, 24)
    a.label("K1_exit")
    a("s_endpgm")
    return R.n
```

```python
from asmlib import *
from layout import *
import os

SLOT = 13312
CPL = 12288
GR0 = 3 * SLOT
GSLOT = 10240
GRING = 3 * GSLOT
FLAGS = GR0 + 3 * 32768 + 4 * 6144
K2_LDS = FLAGS + 64
ASCR = GR0 + 86016
BIAS = 80.0
THR = 2.0 ** (60)
ACT_T16 = 44 * 1024

def gen_k2(a, kidx=2):
    kernel_begin(a, "k2_kernel")
    a("s_cmp_ge_u32 s2, 256")
    a("s_cbranch_scc1 K2_exit")
    prof_begin(a)
    a("s_load_dwordx2 s[4:5], s[0:1], 16")
    a("s_load_dwordx4 s[44:47], s[0:1], 40")
    a("s_load_dwordx2 s[8:9], s[0:1], 56")
    a("s_load_dwordx2 s[10:11], s[0:1], 80")
    a("s_load_dwordx2 s[62:63], s[0:1], 0")
    a("s_load_dwordx2 s[74:75], s[0:1], 64")
    a("v_lshrrev_b32 v1, 6, v0")
    a("v_and_b32 v2, 63, v0")
    a("v_readfirstlane_b32 s12, v1")
    a("s_and_b32 s13, s2, 7")
    a("s_lshl_b32 s13, s13, 2")
    a("s_lshr_b32 s15, s2, 6")
    a("s_add_u32 s13, s13, s15")
    a("s_bfe_u32 s14, s2, 0x30003")
    a("s_and_b32 s32, s13, 1")
    a("s_lshr_b32 s33, s13, 1")
    a("s_mul_i32 s33, s33, 5")
    a("s_mul_i32 s34, s32, 3")
    a("s_add_u32 s34, s34, s33")
    a("s_add_u32 s33, s33, 2")
    a("v_and_b32 v3, 31, v2")
    a("v_lshrrev_b32 v4, 5, v2")
    a("s_waitcnt lgkmcnt(0)")
    srd(a, 24, 10, 11, WS_SIZE)
    a("s_cmp_ge_u32 s12, 4")
    a("s_cbranch_scc1 K2_G")
    gen_A(a, kidx)
    a.label("K2_G")
    gen_G(a, kidx)
    a.label("K2_exit")
    a("s_endpgm")

def gen_A(a, kidx):
    R = Regs(12, 256)
    KA = R.alloc("ka"); KR = R.alloc("kr"); VA = R.alloc("va", 2)
    M = R.alloc("m", 4)
    QM = [R.alloc(f"qm{i}", 4, 4) for i in range(4)]
    QR = [R.alloc(f"qr{i}", 2) for i in range(4)]
    KM = [R.alloc(f"km{i}", 4, 4) for i in range(2)]
    KRm = [R.alloc(f"krm{i}", 2) for i in range(2)]
    VF = [R.alloc(f"vf{i}", 8, 4) for i in range(2)]
    S = [R.alloc(f"s{i}", 16, 4) for i in range(2)]
    P = [R.alloc(f"p{i}", 8, 4) for i in range(2)]
    O = [R.alloc(f"o{i}", 16, 4) for i in range(4)]
    X = R.alloc("x", 32, 4)
    a("s_and_b32 s35, s12, 1")
    a("s_lshr_b32 s36, s12, 1")
    a("s_lshl_b32 s37, s14, 2")
    a("s_lshl_b32 s15, s35, 1")
    a("s_add_u32 s37, s37, s15")
    a("s_add_u32 s38, s37, s36")
    a("s_xor_b32 s39, s38, 1")
    a("v_lshlrev_b32 v5, 2, v4")
    a("v_xor_b32 v5, v5, v3")
    a("v_lshlrev_b32 v5, 4, v5")
    a("v_lshl_add_u32 v6, v4, 15, v5")
    a("v_xor_b32 v7, 8, v3")
    a("v_lshlrev_b32 v7, 4, v7")
    a("s_lshl_b32 s15, s32, 3")
    a("v_add_u32 v7, s15, v7")
    a("s_lshl_b32 s40, s34, 5")
    a("s_add_u32 s41, s40, s39")
    a("s_add_u32 s40, s40, s38")
    a("s_lshl_b32 s40, s40, 10")
    a("s_lshl_b32 s41, s41, 10")
    a("s_lshl_b32 s42, s33, 5")
    a("s_add_u32 s43, s42, s39")
    a("s_add_u32 s42, s42, s38")
    a("s_lshl_b32 s42, s42, 10")
    a("s_lshl_b32 s43, s43, 10")
    for i in range(4):
        a(f"v_mov_b32 v{QR[i]}, 0")
        a(f"v_mov_b32 v{QR[i]+1}, 0")
    for i in range(4):
        a(f"buffer_load_dwordx4 {v(QM[i],4)}, v6, s[24:27], s{40+(i>>1)} offen offset:{512*(i&1)}")
    a("s_mov_b32 exec_hi, 0")
    for i in range(4):
        a(f"buffer_load_dwordx2 {v(QR[i],2)}, v7, s[24:27], s{42+(i>>1)} offen offset:{512*(i&1)}")
    a("s_mov_b32 exec_hi, -1")
    a(f"v_mov_b32 v{X}, 0x3f803f80")
    a(f"v_mov_b32 v{X+1}, 0")
    a(f"v_mov_b32 v{X+2}, 0x3f803f80")
    a(f"v_mov_b32 v{X+3}, 0")
    a("s_min_u32 s15, s12, 2")
    a(f"s_mul_i32 s15, s15, {SLOT}")
    a(f"s_add_u32 s15, s15, {CPL}")
    a("v_lshl_add_u32 v8, v2, 4, s15")
    a(f"ds_write_b128 v8, {v(X,4)}")
    a("s_lshl_b32 s15, s12, 2")
    a(f"s_add_u32 s15, s15, {FLAGS}")
    a(f"v_mov_b32 v8, s15")
    a(f"ds_write_b32 v8, v{X+1}")
    def lds_addrs(sb, sc):
        a("v_lshlrev_b32 v5, 2, v4")
        a("v_xor_b32 v5, v5, v3")
        a("v_lshlrev_b32 v5, 4, v5")
        a(f"v_lshl_add_u32 v{KA}, v4, 10, v5")
        a(f"v_add_u32 v{KA}, s{sb}, v{KA}")
        a("v_xor_b32 v7, 8, v3")
        a("v_lshlrev_b32 v7, 4, v7")
        a("s_lshl_b32 s15, s32, 3")
        a(f"s_add_u32 s15, s15, s{sb}")
        a("s_add_u32 s15, s15, 2048")
        a("v_add_u32 v8, s15, v7")
        a(f"v_lshl_add_u32 v9, v3, 4, s{sc}")
        a("v_cmp_gt_u32 vcc, 32, v2")
        a("v_bfe_u32 v10, v2, 2, 2")
        a("v_lshl_add_u32 v10, v4, 2, v10")
        a(f"v_cndmask_b32 v{KR}, v9, v8, vcc")
        a("v_bfe_u32 v8, v2, 4, 1")
        a("v_and_b32 v9, 3, v2")
        a("v_lshl_add_u32 v8, v8, 2, v9")
        a("v_lshrrev_b32 v9, 1, v8")
        a("v_cmp_lt_u32 vcc, 4, v8")
        a("v_and_b32 v11, 1, v8")
        a("s_nop 0")
        a("v_cndmask_b32 v9, v9, 3, vcc")
        a("v_cmp_eq_u32 s[50:51], 4, v8")
        a("v_mov_b32 v8, s32")
        a("s_nop 0")
        a("v_cndmask_b32 v11, v11, v8, s[50:51]")
        a("v_lshlrev_b32 v8, 2, v9")
        a("v_xor_b32 v8, v8, v10")
        a("v_lshlrev_b32 v8, 4, v8")
        a("v_lshl_add_u32 v8, v11, 3, v8")
        a("v_lshlrev_b32 v9, 10, v9")
        a(f"s_add_u32 s15, s{sb}, 3072")
        a("v_add_u32 v9, s15, v9")
        a(f"v_mov_b32 v11, s{sc}")
        a("v_cndmask_b32 v9, v9, v11, vcc")
        a(f"v_add_u32 v{VA}, v8, v9")
        a(f"v_xor_b32 v{VA+1}, 0x80, v{VA}")
    a("s_mul_i32 s48, s36, 6144")
    a(f"s_movk_i32 s49, {CPL}")
    lds_addrs(48, 49)
    for i in range(8):
        a(f"v_mov_b32 v{P[1]+i}, 0")
        a(f"v_mov_b32 v{VF[1]+i}, 0")
    for i in range(4):
        for j in range(16): a(f"v_mov_b32 v{O[i]+j}, 0")
    a("s_mov_b32 s48, 0")
    a("s_mov_b32 s49, 0")
    a(f"s_mov_b32 s52, {fhex(THR)}")
    a("s_waitcnt vmcnt(0) lgkmcnt(0)")
    a("s_barrier")
    prof_mark(a, 0)
    def rdK(kt):
        return [f"ds_read_b128 {v(KM[kt],4)}, v{KA} offset:{512*kt}", f"ds_read_b64 {v(KRm[kt],2)}, v{KR} offset:{512*kt}"]
    def rdV(kt):
        return [f"ds_read_b64_tr_b16 {v(VF[kt]+4*j+2*e,2)}, v{VA+e} offset:{512*kt+256*j}" for j in range(2) for e in range(2)]
    for ins in rdK(0) + rdK(1) + rdV(0): a(ins)
    a("s_waitcnt lgkmcnt(6)")
    TS = [S[0], S[1], X, X + 16]
    for i in range(4):
        a(f"v_mfma_f32_32x32x16_bf16 {v(TS[i],16)}, {v(KM[0],4)}, {v(QM[i],4)}, 0")
        a(f"v_mfma_f32_32x32x8_bf16 {v(TS[i],16)}, {v(KRm[0],2)}, {v(QR[i],2)}, {v(TS[i],16)}")
    a("s_nop 5")
    def set_m(i, src):
        a(f"v_cvt_pk_bf16_f32 v9, v{src}, v{src}")
        a("v_and_b32 v9, 0xffff0000, v9")
        a(f"v_sub_f32 v{src}, v{src}, v9")
        a(f"v_cvt_pk_bf16_f32 v{src}, -v9, -v{src}")
        a(f"v_and_b32 v{M+i}, 0xffff0000, v{src}")
        a(f"v_sub_f32 v{M+i}, v9, v{M+i}")
        a("s_mov_b32 exec_lo, 0")
        a(f"v_mov_b32 v{QR[i]}, v{src}")
        a("s_mov_b32 exec_lo, -1")
    for i in range(4):
        t = TS[i]
        a(f"v_max3_f32 v{t}, v{t}, v{t+1}, v{t+2}")
        for j in range(3, 15, 2):
            a(f"v_max3_f32 v{t}, v{t}, v{t+j}, v{t+j+1}")
        a(f"v_max_f32 v{t}, v{t}, v{t+15}")
        a(f"v_mov_b32 v{t+1}, v{t}")
    a("s_nop 0")
    for i in range(4):
        a(f"v_permlane32_swap_b32 v{TS[i]}, v{TS[i]+1}")
    for i in range(4):
        t = TS[i]
        a(f"v_max_f32 v{t}, v{t}, v{t+1}")
        a(f"v_add_f32 v{t}, {fhex(BIAS)}, v{t}")
        a(f"v_rndne_f32 v{t}, v{t}")
        a(f"v_cvt_pk_bf16_f32 v{M+i}, v{t}, v{t}")
        a(f"v_and_b32 v{M+i}, 0xffff0000, v{M+i}")
        a(f"v_sub_f32 v{t}, v{t}, v{M+i}")
        a(f"v_cvt_pk_bf16_f32 v{5+i}, -v{M+i}, -v{t}")
    a("s_mov_b32 exec_lo, 0")
    for i in range(4):
        a(f"v_mov_b32 v{QR[i]}, v{5+i}")
    a("s_mov_b32 exec_lo, -1")
    a(f"v_mfma_f32_32x32x16_bf16 {v(S[0],16)}, {v(KM[0],4)}, {v(QM[0],4)}, 0")
    a(f"v_mfma_f32_32x32x8_bf16 {v(S[0],16)}, {v(KRm[0],2)}, {v(QR[0],2)}, {v(S[0],16)}")
    for i in range(4):
        a(f"v_and_b32 v{5+i}, 0xffff0000, v{5+i}")
        a(f"v_sub_f32 v{M+i}, v{M+i}, v{5+i}")
    a("s_nop 2")
    a("s_waitcnt lgkmcnt(0)")
    prof_mark(a, 1)
    rescale = []
    trace_init(a, 250, 79)
    a.label("K2A_loop")
    for nn in range(16):
        n = nn & 7
        qi, kt = n & 3, n >> 2
        qn, ktn = (n + 1) & 3, ((n + 1) >> 2) & 1
        qp, ktp = (n - 1) & 3, ((n - 1) >> 2) & 1
        Sc, Sn, Pc, Pp = S[n & 1], S[(n + 1) & 1], P[n & 1], P[(n + 1) & 1]
        mf = [f"v_mfma_f32_32x32x16_bf16 {v(O[qp],16)}, {v(VF[ktp],4)}, {v(Pp,4)}, {v(O[qp],16)}",
              f"v_mfma_f32_32x32x16_bf16 {v(Sn,16)}, {v(KM[ktn],4)}, {v(QM[qn],4)}, 0",
              f"v_mfma_f32_32x32x8_bf16 {v(Sn,16)}, {v(KRm[ktn],2)}, {v(QR[qn],2)}, {v(Sn,16)}",
              f"v_mfma_f32_32x32x16_bf16 {v(O[qp],16)}, {v(VF[ktp]+4,4)}, {v(Pp+4,4)}, {v(O[qp],16)}"]
        e = [f"v_exp_f32 v{Sc+i}, v{Sc+i}" for i in range(16)]
        c = [f"v_cvt_pk_bf16_f32 v{Pc+i}, v{Sc+2*i}, v{Sc+2*i+1}" for i in range(8)]
        rd = {4: rdK(0), 5: rdV(0)[:2], 6: rdV(0)[2:], 7: rdK(1), 1: rdV(1)[:2], 2: rdV(1)[2:]}.get(n, [])
        post = {g: [] for g in range(4)}
        if n in (3, 7): post[0].append("s_waitcnt lgkmcnt(0)")
        if n == 3:
            post[1] += ["s_add_u32 s49, s49, 1"]
            post[2] += ["s_cmp_eq_u32 s49, 3"]
            post[3] += [f"s_movk_i32 s53, {SLOT}", f"s_cmovk_i32 s53, {(-2*SLOT) & 0xffff}", "s_cmov_b32 s49, 0"]
        if n == 4:
            post[0].append("BARTRACE")
            post[1].append(rd[0]); post[2].append(rd[1])
        elif n == 7:
            post[1].append(rd[0]); post[2].append(rd[1])
            if nn == 15: post[3] += ["s_add_u32 s48, s48, 1", "s_cmp_lt_u32 s48, 8"]
        elif rd:
            post[0].append(rd[0]); post[1].append(rd[1])
        for g in range(4):
            a(mf[g])
            for ins in post[g]:
                if ins == "BARTRACE":
                    trace(a, 250, 79)
                    a("s_cmp_eq_u32 s48, 7")
                    a(f"s_cbranch_scc1 K2A_nb{nn}")
                    a("s_barrier")
                    a.label(f"K2A_nb{nn}")
                    trace(a, 250, 79)
                else: a(ins)
            for ins in e[4*g:4*g+4]: a(ins)
            if g == 0 and nn in (8, 10) and not os.environ.get("K2_NOCHECK"):
                qa, qb_ = (n + 1) & 3, (n + 2) & 3
                a(f"v_max_f32 v5, v{O[qa]+8}, v{O[qb_]+8}")
                a("v_cmp_lt_f32 vcc, s52, v5")
                a("s_cmp_lg_u32 vcc_hi, 0")
                a(f"s_cbranch_scc1 K2A_rs{n}")
                a.label(f"K2A_rs{n}_ret")
                rescale.append((n, qa, qb_))
            if g == 0 and n == 4:
                for r_ in (KA, KR, VA, VA + 1): a(f"v_add_u32 v{r_}, s53, v{r_}")
            if g > 0:
                for ins in c[2*(g-1):2*(g-1)+2]: a(ins)
        for ins in c[6:8]: a(ins)
    a("s_cbranch_scc1 K2A_loop")
    a("s_nop 1")
    a(f"v_mfma_f32_32x32x16_bf16 {v(O[3],16)}, {v(VF[1],4)}, {v(P[1],4)}, {v(O[3],16)}")
    a(f"v_mfma_f32_32x32x16_bf16 {v(O[3],16)}, {v(VF[1]+4,4)}, {v(P[1]+4,4)}, {v(O[3],16)}")
    prof_mark(a, 2)
    SCR = 7168
    for i in range(4):
        a(f"v_mul_f32 v{5+i}, 0, v{O[0]+i}")
    for q in range(4):
        for j in range(12):
            if q == 0 and j < 4: continue
            a(f"v_fmac_f32 v{5+(j&3)}, 0, v{O[q]+j}")
    a(f"v_max3_f32 v9, v{O[0]+8}, v{O[1]+8}, v{O[2]+8}")
    a(f"v_max_f32 v9, v9, v{O[3]+8}")
    a(f"v_mul_f32 v9, {fhex(2.0**28)}, v9")
    a("v_fmac_f32 v5, 0, v9")
    a("v_add_f32 v5, v5, v6")
    a("v_add_f32 v7, v7, v8")
    a("v_cmp_u_f32 vcc, v5, v7")
    if os.environ.get("K2_FORCEFB"): a("s_mov_b64 vcc, -1")
    a("s_cbranch_vccnz K2A_fb")
    a.label("K2A_comb")
    trace(a, 250, 79)
    a(f"s_mul_i32 s15, s12, {SCR}")
    a(f"s_add_u32 s15, s15, {ASCR}")
    a("v_lshl_add_u32 v5, v2, 4, s15")
    a("v_lshl_add_u32 v6, v2, 2, s15")
    a("s_xor_b32 s15, s12, 2")
    a(f"s_mul_i32 s15, s15, {SCR}")
    a(f"s_add_u32 s15, s15, {ASCR}")
    a("v_lshl_add_u32 v7, v2, 4, s15")
    a("v_lshl_add_u32 v8, v2, 2, s15")
    a("s_waitcnt lgkmcnt(0)")
    for qd in range(3):
        a(f"ds_write_b128 v5, {v(O[2]+4*qd,4)} offset:{1024*qd}")
    a(f"ds_write_b32 v6, v{M+2} offset:6144")
    a(f"ds_write_b32 v6, v{M+3} offset:6400")
    for qd in range(3):
        a(f"ds_write_b128 v5, {v(O[3]+4*qd,4)} offset:{3072+1024*qd}")
    a("v_lshrrev_b32 v9, 4, v3")
    a(f"s_mov_b32 s15, {ACT_T16}")
    a("v_mul_lo_u32 v9, v9, s15")
    a("v_and_b32 v10, 15, v3")
    a("v_lshl_add_u32 v10, v10, 4, v9")
    a("v_lshl_add_u32 v9, v4, 8, v10")
    a("s_lshl_b32 s40, s38, 2")
    a("s_mul_i32 s40, s40, 44")
    a("s_lshr_b32 s15, s13, 1")
    a("s_add_u32 s41, s40, s15")
    a("s_lshl_b32 s41, s41, 10")
    a("s_lshl_b32 s15, s32, 9")
    a("s_add_u32 s41, s41, s15")
    a(f"s_add_u32 s41, s41, {WS_ACT}")
    a("s_lshr_b32 s15, s13, 3")
    a("s_add_u32 s42, s40, s15")
    a("s_lshl_b32 s42, s42, 10")
    a("s_bfe_u32 s15, s13, 0x20001")
    a("s_lshl_b32 s15, s15, 8")
    a("s_add_u32 s42, s42, s15")
    a("s_lshl_b32 s15, s32, 3")
    a("s_add_u32 s42, s42, s15")
    a(f"s_add_u32 s42, s42, {WS_ACT + 16*1024}")
    a("s_lshl_b32 s15, s12, 2")
    a(f"s_add_u32 s15, s15, {FLAGS}")
    a("v_mov_b32 v5, s15")
    a("v_xor_b32 v6, 8, v5")
    a("v_mov_b32 v11, 1")
    a("s_waitcnt lgkmcnt(0)")
    a("ds_write_b32 v5, v11")
    a.label("K2A_poll")
    a("ds_read_b32 v11, v6")
    a("s_waitcnt lgkmcnt(0)")
    a("v_cmp_eq_u32 vcc, 0, v11")
    a("s_cbranch_vccnz K2A_poll")
    trace(a, 250, 79)
    for i in range(2):
        a(f"ds_read_b32 v{X+24+i}, v8 offset:{6144+256*i}")
        for qd in range(3):
            a(f"ds_read_b128 {v(X+12*i+4*qd,4)}, v7 offset:{3072*i+1024*qd}")
    for i in range(2):
        a(f"s_waitcnt lgkmcnt({4*(1-i)})")
        mb = X + 24 + i
        a(f"v_max_f32 v5, v{M+i}, v{mb}")
        a(f"v_sub_f32 v6, v{M+i}, v5")
        a(f"v_sub_f32 v7, v{mb}, v5")
        a("v_cvt_i32_f32 v6, v6")
        a("v_cvt_i32_f32 v7, v7")
        a(f"v_ldexp_f32 v5, v{O[i]+8}, v6")
        a(f"v_ldexp_f32 v8, v{X+12*i+8}, v7")
        a("v_add_f32 v5, v5, v8")
        a("v_mov_b32 v8, v5")
        a("s_nop 1")
        a("v_permlane32_swap_b32 v5, v8")
        a("v_rcp_f32 v8, v8")
        a("s_nop 0")
        a("v_ldexp_f32 v6, v8, v6")
        a("v_ldexp_f32 v7, v8, v7")
        for j in range(12):
            a(f"v_mul_f32 v{O[i]+j}, v{O[i]+j}, v6")
        for j in range(12):
            a(f"v_fmac_f32 v{O[i]+j}, v{X+12*i+j}, v7")
        for j in range(6):
            a(f"v_cvt_pk_bf16_f32 v{S[i]+j}, v{O[i]+2*j}, v{O[i]+2*j+1}")
        a(f"buffer_store_dwordx4 {v(S[i],4)}, v9, s[24:27], s41 offen sc1")
        a("s_mov_b32 exec_hi, 0")
        a(f"buffer_store_dwordx2 {v(S[i]+4,2)}, v10, s[24:27], s42 offen sc1")
        a("s_mov_b32 exec_hi, -1")
        if i == 0:
            a(f"s_add_u32 s41, s41, {2*ACT_T16}")
            a(f"s_add_u32 s42, s42, {2*ACT_T16}")
    trace(a, 250, 79)
    a("s_lshl_b32 s15, s38, 6")
    a("s_add_u32 s15, s15, s13")
    a("s_lshl_b32 s15, s15, 2")
    a(f"s_add_u32 s41, s15, {FL_UO + 128}")
    a("v_mov_b32 v5, 1")
    a("v_mov_b32 v6, 0")
    a("s_mov_b64 exec, 1")
    a("s_waitcnt vmcnt(0)")
    a("buffer_store_dword v5, v6, s[24:27], s41 offen sc1")
    a("s_mov_b64 exec, -1")
    trace(a, 250, 79)
    prof_mark(a, 3)
    trace_dump(a, 250, kidx, 24)
    prof_end(a, kidx, 24)
    for (n, qa, qb_) in rescale:
        a.label(f"K2A_rs{n}")
        for q in (qa, qb_):
            a(f"v_mov_b32 v5, v{O[q]+8}")
            a(f"v_mov_b32 v6, v{O[q]+8}")
            a("s_nop 1")
            a("v_permlane32_swap_b32 v5, v6")
            a("v_frexp_exp_i32_f32 v7, v6")
            a("v_cvt_f32_i32 v7, v7")
            a(f"v_add_f32 v7, {fhex(BIAS)}, v7")
            a("v_cmp_lt_f32 vcc, s52, v6")
            a(f"v_mov_b32 v8, v{M+q}")
            a("s_nop 0")
            a("v_cndmask_b32 v7, 0, v7, vcc")
            a(f"v_add_f32 v7, v7, v8")
            set_m(q, 7)
            a(f"v_sub_f32 v8, v8, v{M+q}")
            a("v_cvt_i32_f32 v8, v8")
            for j in range(16):
                a(f"v_ldexp_f32 v{O[q]+j}, v{O[q]+j}, v8")
        a("s_nop 1")
        a(f"s_branch K2A_rs{n}_ret")

    a.label("K2A_fb")
    a(f"s_mul_i32 s48, s12, {SCR}")
    a(f"s_add_u32 s48, s48, {ASCR}")
    a("s_add_u32 s49, s48, 6144")
    a("s_waitcnt lgkmcnt(0)")
    lds_addrs(48, 49)
    a(f"v_mov_b32 v{X}, 0x3f803f80")
    a(f"v_mov_b32 v{X+1}, 0")
    a(f"v_mov_b32 v{X+2}, 0x3f803f80")
    a(f"v_mov_b32 v{X+3}, 0")
    a("v_lshl_add_u32 v8, v2, 4, s49")
    a(f"ds_write_b128 v8, {v(X,4)}")
    a("v_lshlrev_b32 v11, 4, v2")
    a("s_mov_b32 exec_lo, 0")
    for i in range(4): a(f"v_mov_b32 v{QR[i]}, 0")
    a("s_mov_b32 exec_lo, -1")
    for i in range(4):
        a(f"v_mov_b32 v{M+i}, 0xff800000")
        for j in range(16): a(f"v_mov_b32 v{O[i]+j}, 0")
    a("s_mov_b32 s54, 0")
    a.label("K2A_fb_pass")
    a("s_lshl_b32 s15, s36, 4")
    for d, src, ty in ((56, 34, 80), (57, 33, 80), (58, 34, 160), (59, 33, 160)):
        a(f"s_add_u32 s{d}, s{src}, {ty}")
        a(f"s_lshl_b32 s{d}, s{d}, 5")
        a(f"s_add_u32 s{d}, s{d}, s15")
        a(f"s_lshl_b32 s{d}, s{d}, 10")
    a("s_mov_b32 s55, 0")
    a.label("K2A_fb_blk")
    for pl, (d, add) in enumerate(((56, 0), (56, 32768), (57, 0), (58, 0), (58, 32768), (59, 0))):
        a(f"s_add_u32 m0, s48, {1024*pl}")
        a(f"s_add_u32 s15, s{d}, {add}")
        a("buffer_load_dwordx4 v11, s[24:27], s15 offen lds")
    for d in (56, 57, 58, 59): a(f"s_add_u32 s{d}, s{d}, 1024")
    a("s_waitcnt vmcnt(0) lgkmcnt(0)")
    for ins in rdK(0) + rdK(1) + rdV(0) + rdV(1): a(ins)
    a("s_waitcnt lgkmcnt(0)")
    a("s_mov_b32 s60, 0")
    a.label("K2A_fb_kt")
    for q in range(4):
        a(f"v_mfma_f32_32x32x16_bf16 {v(S[0],16)}, {v(KM[0],4)}, {v(QM[q],4)}, 0")
        a(f"v_mfma_f32_32x32x8_bf16 {v(S[0],16)}, {v(KRm[0],2)}, {v(QR[q],2)}, {v(S[0],16)}")
        a("s_nop 15")
        a("s_cmp_eq_u32 s54, 0")
        a(f"s_cbranch_scc0 K2A_fb_e{q}")
        for j in range(0, 16, 2):
            a(f"v_max3_f32 v{M+q}, v{M+q}, v{S[0]+j}, v{S[0]+j+1}")
        a(f"s_branch K2A_fb_n{q}")
        a.label(f"K2A_fb_e{q}")
        for j in range(16): a(f"v_exp_f32 v{S[0]+j}, v{S[0]+j}")
        a("s_nop 0")
        for j in range(8): a(f"v_cvt_pk_bf16_f32 v{P[0]+j}, v{S[0]+2*j}, v{S[0]+2*j+1}")
        a("s_nop 1")
        a(f"v_mfma_f32_32x32x16_bf16 {v(O[q],16)}, {v(VF[0],4)}, {v(P[0],4)}, {v(O[q],16)}")
        a(f"v_mfma_f32_32x32x16_bf16 {v(O[q],16)}, {v(VF[0]+4,4)}, {v(P[0]+4,4)}, {v(O[q],16)}")
        a.label(f"K2A_fb_n{q}")
    for j in range(4): a(f"v_mov_b32 v{KM[0]+j}, v{KM[1]+j}")
    for j in range(2): a(f"v_mov_b32 v{KRm[0]+j}, v{KRm[1]+j}")
    for j in range(8): a(f"v_mov_b32 v{VF[0]+j}, v{VF[1]+j}")
    a("s_add_u32 s60, s60, 1")
    a("s_cmp_lt_u32 s60, 2")
    a("s_cbranch_scc1 K2A_fb_kt")
    a("s_add_u32 s55, s55, 1")
    a("s_cmp_lt_u32 s55, 16")
    a("s_cbranch_scc1 K2A_fb_blk")
    a("s_nop 15")
    a("s_cmp_eq_u32 s54, 0")
    a("s_cbranch_scc0 K2A_comb")
    for q in range(4):
        a(f"v_mov_b32 v5, v{M+q}")
        a(f"v_mov_b32 v6, v{M+q}")
        a("s_nop 1")
        a("v_permlane32_swap_b32 v5, v6")
        a("v_max_f32 v5, v5, v6")
        a("v_rndne_f32 v5, v5")
        a("v_cvt_pk_bf16_f32 v6, v5, v5")
        a("v_and_b32 v6, 0xffff0000, v6")
        a("v_sub_f32 v7, v5, v6")
        a("v_cvt_pk_bf16_f32 v8, -v6, -v7")
        a("v_and_b32 v7, 0xffff0000, v8")
        a(f"v_sub_f32 v{M+q}, v6, v7")
        a("s_mov_b32 exec_lo, 0")
        a(f"v_mov_b32 v{QR[q]}, v8")
        a("s_mov_b32 exec_lo, -1")
    a("s_mov_b32 s54, 1")
    a("s_branch K2A_fb_pass")

def gen_G(a, kidx):
    from kn import ln_scalars
    NJ = 4
    GS = 8192 * NJ
    NSCR = GR0 + 3 * GS
    D0 = 4
    R = Regs(12, 250)
    VL = R.alloc("vl")
    VW = R.alloc("vw", 2)
    BA = R.alloc("ba", 2)
    Z1 = R.alloc("z1", 12, 4)
    BS = R.alloc("bs", 2)
    BF = [[R.alloc(f"bf{ks}{t}", 4, 4) for t in range(4)] for ks in range(NJ)]
    AF = [[R.alloc(f"af{ks}{t}", 4, 4) for t in range(3)] for ks in range(NJ)]
    ACC = R.alloc("acc", 48, 4)
    WT = R.alloc("wt", 8, 4)
    def acc(tt, ft): return ACC + (tt * 3 + ft) * 4
    a("s_sub_u32 s12, s12, 4")
    a("s_setprio 1")
    trace_init(a, 13, 79)
    a(f"v_lshlrev_b32 v{VL}, 4, v2")
    a("s_and_b32 s15, s12, 1")
    a("s_add_u32 s35, s15, 1")
    a("s_mul_i32 s35, s35, 80")
    a("s_lshr_b32 s36, s12, 1")
    a("s_lshl_b32 s37, s36, 4")
    a("s_add_u32 s38, s34, s35")
    a("s_lshl_b32 s38, s38, 5")
    a("s_add_u32 s38, s38, s37")
    a("s_lshl_b32 s38, s38, 10")
    a(f"s_add_u32 s39, s38, {32768-1024}")
    a("s_add_u32 s40, s33, s35")
    a("s_lshl_b32 s40, s40, 5")
    a("s_add_u32 s40, s40, s37")
    a("s_lshl_b32 s40, s40, 10")
    a("s_sub_u32 s40, s40, 2048")
    a("s_mul_i32 s41, s12, 3072")
    a("s_mov_b32 s42, 0")
    def kv_ops():
        return ["s_mov_b32 m0, s41\ns_add_u32 s42, s42, 1\n" + f"buffer_load_dwordx4 v{VL}, s[24:27], s38 offen lds",
                f"buffer_load_dwordx4 v{VL}, s[24:27], s39 offen offset:1024 lds\ns_add_u32 s38, s38, 1024\ns_add_u32 s39, s39, 1024",
                f"buffer_load_dwordx4 v{VL}, s[24:27], s40 offen offset:2048 lds\ns_add_u32 s40, s40, 1024\ns_cmp_eq_u32 s42, 3\n"
                f"s_movk_i32 s15, {SLOT}\ns_cmovk_i32 s15, {(-2*SLOT) & 0xffff}\ns_cmov_b32 s42, 0\ns_add_u32 s41, s41, s15"]
    def issue_kv():
        for o in kv_ops(): a(o)
    for _ in range(2): issue_kv()
    NR = BF[0][0]
    NS = BF[1][0]
    a("v_lshlrev_b32 v7, 2, v4")
    a("v_xor_b32 v7, v7, v2")
    a("v_lshlrev_b32 v7, 4, v7")
    a("v_xor_b32 v8, 0x80, v7")
    a("v_lshlrev_b32 v9, 3, v3")
    a("v_lshrrev_b32 v5, 4, v2")
    a("v_and_b32 v6, 15, v2")
    a("s_mul_i32 s66, s12, 6144")
    a(f"s_add_u32 s66, s66, {NSCR}")
    def norm_load():
        a("s_mul_i32 s15, s64, 48")
        a("s_mul_i32 s67, s65, 3")
        a("s_add_u32 s15, s15, s67")
        a("s_lshl_b32 s67, s15, 10")
        a(f"s_add_u32 s68, s67, {WS_Z2R}")
        a("s_and_b32 s15, s65, 1")
        a("s_lshl_b32 s69, s15, 7")
        a("v_xor_b32 v10, s69, v7")
        a("v_xor_b32 v11, s69, v8")
        a("s_lshl_b32 s15, s64, 11")
        a(f"s_add_u32 s15, s15, {WS_ST}")
        for p in range(8):
            a(f"buffer_load_dwordx2 {v(NS+2*p,2)}, v9, s[24:27], s15 offen offset:{256*p}")
        for i in range(3):
            a(f"buffer_load_dwordx4 {v(NR+4*i,4)}, v{10+(i&1)}, s[24:27], s68 offen offset:{1024*i}")
    def norm_compute():
        for p in range(1, 8):
            a(f"v_add_f32 v{NS}, v{NS}, v{NS+2*p}")
            a(f"v_add_f32 v{NS+1}, v{NS+1}, v{NS+2*p+1}")
        ln_scalars(a, NS, NS+1, 768, NS+2, NS+3)
        a(f"v_mul_f32 v{NS+2}, v{NS+2}, v{NS+3}")
        for i in range(12):
            a(f"v_lshlrev_b32 v{NS+4}, 16, v{NR+i}")
            a(f"v_and_b32 v{NS+5}, 0xffff0000, v{NR+i}")
            a(f"v_fma_f32 v{NS+4}, v{NS+4}, v{NS+3}, v{NS+2}")
            a(f"v_fma_f32 v{NS+5}, v{NS+5}, v{NS+3}, v{NS+2}")
            a(f"v_cvt_pk_bf16_f32 v{NR+i}, v{NS+4}, v{NS+5}")
        a(f"v_add_u32 v10, s66, v{VL}")
        for i in range(3):
            a(f"ds_write_b128 v10, {v(NR+4*i,4)} offset:{1024*i}")
        a("v_bfe_u32 v11, v2, 2, 2")
        a("v_lshl_add_u32 v11, v5, 3, v11")
        a("v_lshlrev_b32 v11, 4, v11")
        a("v_and_b32 v10, 1, v2")
        a("v_lshl_add_u32 v11, v10, 9, v11")
        a("v_bfe_u32 v10, v2, 1, 1")
        a("v_lshl_add_u32 v11, v10, 3, v11")
        a("v_add_u32 v11, s66, v11")
        a(f"s_add_u32 s68, s67, {WS_Z2N}")
        a("s_waitcnt lgkmcnt(0)")
        for i in range(3):
            for e in range(2):
                a(f"ds_read_b64_tr_b16 {v(NR+4*i+2*e,2)}, v11 offset:{1024*i+64*e}")
        a("s_waitcnt lgkmcnt(0)")
        for i in range(3):
            a(f"buffer_store_dwordx4 {v(NR+4*i,4)}, v{VL}, s[24:27], s68 offen offset:{1024*i} sc1")
    a("s_lshl_b32 s15, s2, 2")
    a("s_add_u32 s15, s15, s12")
    a("s_lshr_b32 s64, s15, 4")
    a("s_and_b32 s65, s15, 15")
    norm_load()
    srd(a, 16, 44, 45, 2048 * 2048 * 2)
    srd(a, 20, 46, 47, 4096)
    srd(a, 28, 10, 11, WS_Z2N + 64*48*1024)
    a("s_and_b32 s48, s2, 3")
    a("s_lshl_b32 s48, s48, 3")
    a("s_add_u32 s48, s48, s14")
    a("s_bfe_u32 s49, s2, 0x10002")
    a("s_lshl_b32 s49, s49, 2")
    a("s_lshr_b32 s15, s2, 6")
    a("s_add_u32 s49, s49, s15")
    a("s_and_b32 s56, s12, 1")
    a("s_lshr_b32 s57, s12, 1")
    a("s_lshl_b32 s70, s49, 1")
    a("s_add_u32 s70, s70, s57")
    a("s_mul_i32 s50, s56, 48")
    a("s_mul_i32 s15, s70, 3")
    a("s_add_u32 s50, s50, s15")
    a("s_lshl_b32 s50, s50, 10")
    a(f"s_add_u32 s50, s50, {WS_Z2N}")
    a("s_lshl_b32 s51, s48, 18")
    a("s_lshl_b32 s15, s12, 16")
    a("s_add_u32 s51, s51, s15")
    a("v_lshrrev_b32 v10, 3, v2")
    a("v_and_b32 v11, 7, v2")
    for i in range(2):
        a(f"v_add_u32 v{VW+i}, {4*i}, v5")
        a(f"v_xor_b32 v{VW+i}, v{VW+i}, v11")
        a(f"v_lshlrev_b32 v{VW+i}, 4, v{VW+i}")
        a(f"v_lshl_add_u32 v{VW+i}, v10, 12, v{VW+i}")
    a(f"v_add_u32 v{VW+1}, {8*4096-1024}, v{VW+1}")
    a("s_lshl_b32 s52, s12, 11")
    a(f"s_add_u32 s52, s52, {GR0}")
    a("s_mov_b32 s54, 0")
    a(f"s_mov_b32 s77, {GS}")
    a(f"s_mov_b32 s78, {(-2*GS) & 0xffffffff}")
    def w_ops():
        o = []
        for sb in range(NJ):
            o.append(f"s_add_u32 m0, s52, {8192*sb}\n" + ("s_add_u32 s54, s54, 1\n" if sb == 0 else "s_add_u32 s51, s51, 128\n") + f"buffer_load_dwordx4 v{VW}, s[16:19], s51 offen lds")
            o.append(f"buffer_load_dwordx4 v{VW+1}, s[16:19], s51 offen offset:1024 lds")
        o[-1] += "\ns_add_u32 s51, s51, 128\ns_cmp_eq_u32 s54, 3\ns_cselect_b32 s15, s78, s77\ns_cmov_b32 s54, 0\ns_add_u32 s52, s52, s15"
        return o
    def z_ops(j):
        o = [f"buffer_load_dwordx4 {v(AF[j][ft],4)}, v{VL}, s[28:31], s50 offen offset:{1024*ft} sc1" for ft in range(3)]
        o[-1] += f"\ns_add_u32 s50, s50, {96*1024}"
        return o
    a("v_lshrrev_b32 v10, 1, v6")
    a("s_lshl_b32 s15, s56, 2")
    a("v_or_b32 v11, s15, v5")
    a("v_xor_b32 v10, v10, v11")
    a("v_lshlrev_b32 v10, 4, v10")
    a("v_lshl_add_u32 v10, v6, 7, v10")
    a("s_lshl_b32 s15, s56, 12")
    a(f"v_add_u32 v10, s15, v10")
    a(f"v_xor_b32 v11, 0x1000, v10")
    a(f"v_add_u32 v{BA}, {GR0}, v10")
    a(f"v_add_u32 v{BA+1}, {GR0}, v11")
    for i in range(48): a(f"v_mov_b32 v{ACC+i}, 0")
    a("s_mov_b32 s76, 0")
    def flag_store(sreg):
        a("v_mov_b32 v10, 1")
        a("v_mov_b32 v11, 0")
        a("s_mov_b64 exec, 1")
        a(f"buffer_store_dword v10, v11, s[24:27], s{sreg} offen sc1")
        a("s_mov_b64 exec, -1")
    a("s_waitcnt vmcnt(14)")
    a("s_barrier")
    issue_kv()
    a("s_waitcnt vmcnt(3)")
    norm_compute()
    trace(a, 13, 79)
    a("s_barrier")
    trace(a, 13, 79)
    issue_kv()
    a("v_and_b32 v10, 1, v5")
    a("v_lshrrev_b32 v11, 1, v5")
    a("s_lshl_b32 s60, s48, 1")
    a("s_add_u32 s60, s60, s56")
    for ft in range(3):
        a(f"s_mul_i32 s15, s70, 3")
        a(f"s_add_u32 s15, s15, {ft}")
        a(f"s_and_b32 s58, s15, 1")
        a(f"s_lshl_b32 s58, s58, 1")
        a(f"s_lshr_b32 s15, s15, 1")
        a(f"s_mul_i32 s59, s60, 24")
        a(f"s_add_u32 s15, s15, s59")
        a(f"s_lshl_b32 s15, s15, 11")
        a(f"s_add_u32 s59, s15, {WS_Z1}")
        a(f"v_or_b32 v{WT}, s58, v10")
        a(f"v_lshlrev_b32 v{WT+1}, 2, v{WT}")
        a(f"v_xor_b32 v{WT+1}, v{WT+1}, v6")
        a(f"v_lshlrev_b32 v{WT+1}, 4, v{WT+1}")
        a(f"v_lshl_add_u32 v{WT+1}, v{WT}, 9, v{WT+1}")
        a(f"v_lshl_add_u32 v{WT+1}, v11, 3, v{WT+1}")
        for tt in range(2):
            a(f"buffer_load_dwordx2 {v(Z1+(tt*3+ft)*2,2)}, v{WT+1}, s[24:27], s59 offen offset:{256*tt}")
    a(f"v_lshlrev_b32 v{WT}, 1, v6")
    a("s_lshl_b32 s59, s60, 6")
    for tt in range(2):
        a(f"buffer_load_ushort v{BS+tt}, v{WT}, s[20:23], s59 offen offset:{32*tt}")
    a(f"s_lshl_b32 s80, s2, 2")
    a(f"s_add_u32 s80, s80, s12")
    a(f"s_cmp_lt_u32 s80, 880")
    sel(a, 55, 0, 0x40000000)
    a(f"s_min_u32 s80, s80, 879")
    a(f"s_mul_hi_u32 s81, s80, 0xCCCCCCD")
    a(f"s_mul_i32 s15, s81, 20")
    a(f"s_sub_u32 s82, s80, s15")
    a(f"s_mul_i32 s83, s81, 40")
    a(f"s_mov_b32 s6, 24"); a(f"s_mov_b32 s7, 4"); a(f"s_mov_b32 s61, 8")
    a(f"s_mul_i32 s15, s81, 160")
    a(f"s_sub_u32 s15, s15, {160*16 - 16}")
    a(f"s_cmp_ge_u32 s81, 16")
    a(f"s_cmov_b32 s83, s15"); a(f"s_cmovk_i32 s6, 80"); a(f"s_cmov_b32 s7, 40"); a(f"s_cmov_b32 s61, 4")
    a(f"s_lshl_b32 s15, s81, 5")
    a(f"s_sub_u32 s15, s15, 640")
    a(f"s_cmp_ge_u32 s81, 20")
    a(f"s_cmov_b32 s83, s15"); a(f"s_cmov_b32 s6, 8"); a(f"s_cmov_b32 s7, 4"); a(f"s_cmov_b32 s61, 16")
    a(f"s_cselect_b32 s44, s8, s4")
    a(f"s_cselect_b32 s45, s9, s5")
    sel(a, 46, 768*1280, 640*1280)
    a(f"s_and_b32 s45, s45, 0xffff")
    a(f"s_mov_b32 s47, 0x00020000")
    a(f"v_bfe_u32 v{WT+2}, v2, 2, 2")
    a(f"v_bfe_u32 v{WT+4}, v2, 4, 1")
    a(f"v_mul_lo_u32 v{WT+4}, v{WT+4}, s61")
    a(f"v_add_u32 v{WT+3}, v{WT+2}, v{WT+4}")
    a(f"v_mul_lo_u32 v{WT+4}, v4, s7")
    a(f"v_add3_u32 v{WT+3}, v{WT+3}, v{WT+4}, s83")
    a(f"s_movk_i32 s15, 1280")
    a(f"v_mul_lo_u32 v{WT+3}, v{WT+3}, s15")
    a(f"v_and_b32 v{WT+4}, 3, v2")
    a(f"v_lshl_add_u32 v{WT+3}, v{WT+4}, 4, v{WT+3}")
    a(f"s_lshl_b32 s71, s82, 6")
    a(f"s_mul_i32 s15, s6, 1280")
    a(f"s_add_u32 s72, s71, s15")
    a(f"s_sub_u32 s72, s72, 1024")
    a("s_add_u32 s73, s66, 4096")
    a(f"s_mov_b32 m0, s73")
    a(f"s_nop 0")
    a(f"buffer_load_dwordx4 v{WT+3}, s[44:47], s71 offen lds")
    a(f"buffer_load_dwordx4 v{WT+3}, s[44:47], s72 offen offset:1024 lds")
    a("s_lshl_b32 s15, s65, 6")
    a("s_add_u32 s15, s15, s64")
    a("s_lshl_b32 s15, s15, 2")
    a(f"s_add_u32 s71, s15, {FL_Z}")
    a("s_waitcnt vmcnt(13)")
    flag_store(71)
    trace(a, 13, 79)
    a("s_barrier")
    issue_kv()
    a("s_waitcnt vmcnt(4)")
    a("v_bfe_u32 v11, v2, 2, 2")
    a(f"v_lshl_add_u32 v10, v5, 3, v11")
    a(f"v_lshlrev_b32 v10, 6, v10")
    a(f"v_and_b32 v{WT+7}, 3, v2")
    a(f"v_lshl_add_u32 v10, v{WT+7}, 3, v10")
    a(f"v_add_u32 v10, s73, v10")
    for nn in range(2):
        for e in range(2):
            a(f"ds_read_b64_tr_b16 {v(WT+4*nn+2*e,2)}, v10 offset:{256*e+32*nn}")
    a(f"s_lshl_b32 s15, s82, 1")
    a(f"s_mul_i32 s15, s15, 44")
    a(f"s_add_u32 s15, s15, s81")
    a(f"s_lshl_b32 s15, s15, 10")
    a("s_add_u32 s15, s15, s55")
    a(f"s_add_u32 s71, s15, {WS_WF}")
    a(f"s_add_u32 s72, s71, {44*1024}")
    a(f"s_waitcnt lgkmcnt(0)")
    a(f"buffer_store_dwordx4 {v(WT,4)}, v{VL}, s[24:27], s71 offen sc1")
    a(f"buffer_store_dwordx4 {v(WT+4,4)}, v{VL}, s[24:27], s72 offen sc1")
    a("s_barrier")
    trace(a, 13, 79)
    issue_kv()
    for o in w_ops(): a(o)
    a("s_lshl_b32 s15, s70, 8")
    a(f"s_add_u32 s71, s15, {FL_Z}")
    a("v_lshlrev_b32 v11, 2, v2")
    a("s_mov_b32 s72, 0")
    a.label("K2G_poll")
    a("buffer_load_dword v10, v11, s[24:27], s71 offen sc1")
    a("s_add_u32 s72, s72, 1")
    a("s_waitcnt vmcnt(0)")
    a("v_cmp_ne_u32 vcc, 1, v10")
    a("s_cbranch_vccz K2G_ready")
    a("s_cmp_lt_u32 s72, 400")
    a("s_cbranch_scc0 K2G_self")
    a("s_sleep 4")
    a("s_branch K2G_poll")
    a.label("K2G_ready")
    trace(a, 13, 79)
    for j in range(NJ):
        for o in z_ops(j): a(o)
    a("s_lshl_b32 s15, s82, 6")
    a("s_add_u32 s15, s15, s81")
    a("s_lshl_b32 s15, s15, 2")
    a("s_add_u32 s15, s15, s55")
    a(f"s_add_u32 s71, s15, {FL_W}")
    flag_store(71)
    a("s_barrier")
    issue_kv()
    for o in w_ops(): a(o)
    a(f"s_mov_b32 s53, {D0}")
    def reads(j):
        return [f"ds_read_b128 {v(BF[j][t],4)}, v{BA+(t>>1)} offset:{8192*j + 2048*(t&1)}" for t in range(4)]
    def stage(kvw):
        for j in range(3):
            for ins in reads(j): a(ins)
        kvw = list(kvw)
        per = (len(kvw) + NJ - 2) // (NJ - 1)
        parts = [kvw[per*j:per*(j+1)] for j in range(NJ - 1)] + [[]]
        total = len(kvw) + 3 * NJ
        for j in range(NJ):
            a(f"s_waitcnt vmcnt({total - len(parts[j]) - 3}) lgkmcnt({[8, 8, 4, 0][j]})")
            todo = list(parts[j])
            for t in range(4):
                for ft in range(3):
                    if not os.environ.get("K2_NOGMFMA"):
                        a(f"v_mfma_f32_16x16x32_bf16 {v(acc(t,ft),4)}, {v(AF[j][ft],4)}, {v(BF[j][t],4)}, {v(acc(t,ft),4)}")
                    if j == 0 and ft == 0: a(reads(3)[t])
                    if todo and (t*3+ft) % 2 == 1: a(todo.pop(0))
            assert not todo
            for o in z_ops(j): a(o)
        a("s_add_u32 s76, s76, 1")
        a("s_cmp_eq_u32 s76, 3")
        a("s_cselect_b32 s15, s78, s77")
        a("s_cmov_b32 s76, 0")
        for r_ in (BA, BA+1): a(f"v_add_u32 v{r_}, s15, v{r_}")
    a("s_waitcnt vmcnt(12)")
    a("s_setprio 0")
    a.label("K2G_stage")
    trace(a, 13, 79)
    a("s_barrier")
    trace(a, 13, 79)
    stage(kv_ops() + w_ops())
    a("s_cmp_eq_u32 s53, 7")
    a("s_cbranch_scc1 K2G_wq")
    a("s_cmp_eq_u32 s53, 8")
    a("s_cbranch_scc1 K2G_wt")
    a.label("K2G_next")
    a("s_add_u32 s53, s53, 1")
    a("s_cmp_lt_u32 s53, 12")
    a("s_cbranch_scc1 K2G_stage")
    prof_mark(a, 0)
    a("s_setprio 1")
    a(f"v_add_u32 v10, s66, v{VL}")
    a("s_xor_b32 s15, s12, 1")
    a("s_mul_i32 s15, s15, 6144")
    a(f"s_add_u32 s15, s15, {NSCR}")
    a(f"v_add_u32 v11, s15, v{VL}")
    a("s_nop 4")
    for n in range(6):
        a(f"ds_write_b128 v10, {v(ACC+24+4*n,4)} offset:{1024*n}")
    a("s_waitcnt lgkmcnt(0)")
    a("s_barrier")
    issue_kv()
    PB = BF[0][0]
    for n in range(6):
        a(f"ds_read_b128 {v(PB+4*n,4)}, v11 offset:{1024*n}")
    prof_mark(a, 1)
    P = BF[2][0]
    a("s_waitcnt lgkmcnt(0)")
    for tt in range(2):
        a(f"v_lshlrev_b32 v{BS+tt}, 16, v{BS+tt}")
    for tt in range(2):
        for ft in range(3):
            A = acc(tt, ft); Z = Z1 + (tt*3+ft)*2; Q = PB + (tt*3+ft)*4
            for j in range(4): a(f"v_add_f32 v{A+j}, v{A+j}, v{BS+tt}")
            for j in range(4): a(f"v_add_f32 v{A+j}, v{A+j}, v{Q+j}")
            for j in range(2):
                a(f"v_lshlrev_b32 v8, 16, v{Z+j}")
                a(f"v_and_b32 v9, 0xffff0000, v{Z+j}")
                a(f"v_mul_f32 v{A+2*j}, v{A+2*j}, v8")
                a(f"v_mul_f32 v{A+2*j+1}, v{A+2*j+1}, v9")
                a(f"v_cvt_pk_bf16_f32 v{P+(tt*3+ft)*2+j}, v{A+2*j}, v{A+2*j+1}")
    a("s_mul_i32 s61, s70, 3")
    a("s_mul_i32 s43, s60, 88")
    for ft in range(3):
        a(f"s_add_u32 s15, s61, {ft}")
        a("s_and_b32 s58, s15, 1")
        a("s_lshl_b32 s58, s58, 3")
        a("s_lshr_b32 s15, s15, 1")
        a("s_add_u32 s15, s15, s43")
        a("s_lshl_b32 s15, s15, 10")
        a("s_add_u32 s15, s15, s58")
        a(f"s_add_u32 s59, s15, {WS_ACT + 20*1024}")
        a(f"buffer_store_dwordx2 {v(P+ft*2,2)}, v{VL}, s[24:27], s59 offen sc1")
        a(f"s_add_u32 s59, s59, {ACT_T16}")
        a(f"buffer_store_dwordx2 {v(P+(3+ft)*2,2)}, v{VL}, s[24:27], s59 offen sc1")
    gen_P3(a, kidx, VL)
    trace(a, 13, 79)
    trace_dump(a, 13, kidx, 24)
    prof_end(a, kidx, 24)
    a.label("K2G_wq")
    a("v_lshlrev_b32 v11, 2, v2")
    a("s_mul_i32 s15, s49, 5")
    a("s_lshr_b32 s15, s15, 1")
    a("s_lshl_b32 s15, s15, 8")
    a(f"s_add_u32 s71, s15, {FL_W}")
    for i in range(3):
        a(f"buffer_load_dword v{WT+i}, v11, s[24:27], s71 offen offset:{256*i} sc1")
    a("s_branch K2G_next")
    a.label("K2G_wt")
    a(f"v_and_b32 v{WT}, v{WT}, v{WT+1}")
    a(f"v_and_b32 v{WT}, v{WT}, v{WT+2}")
    a(f"v_cmp_ne_u32 vcc, 1, v{WT}")
    a("s_and_b32 vcc_hi, vcc_hi, 0xfff")
    a("s_cmp_eq_u64 vcc, 0")
    a("s_cbranch_scc0 K2G_next")
    a("s_and_b32 s15, s48, 7")
    a("s_lshl_b32 s15, s15, 2")
    a("s_add_u32 s15, s15, s12")
    a("s_mul_i32 s15, s15, 7040")
    a("s_mul_i32 s71, s49, 220")
    a("s_lshl_b32 s71, s71, 10")
    a("s_add_u32 s71, s71, s15")
    a(f"s_add_u32 s71, s71, {WS_WF}")
    a("v_min_u32 v11, 54, v2")
    a("v_lshlrev_b32 v11, 7, v11")
    a(f"buffer_load_dword v{WT}, v11, s[24:27], s71 offen sc1")
    a("s_branch K2G_next")
    a.label("K2G_self")
    a("s_mov_b32 s64, 0")
    a("s_mov_b32 s65, s70")
    a.label("K2G_self_loop")
    norm_load()
    a("s_waitcnt vmcnt(0)")
    norm_compute()
    a("s_add_u32 s64, s64, 1")
    a("s_cmp_lt_u32 s64, 64")
    a("s_cbranch_scc1 K2G_self_loop")
    a("s_waitcnt vmcnt(0)")
    a("s_branch K2G_ready")

def poll(a, name, voff, soff, execmask, vdst, nloads=1, stride=256):
    a("s_mov_b32 s72, 0")
    a.label(f"{name}_l")
    for i in range(nloads):
        a(f"buffer_load_dword v{vdst+i}, v{voff}, s[24:27], s{soff} offen offset:{stride*i} sc1")
    a("s_add_u32 s72, s72, 1")
    a("s_waitcnt vmcnt(0)")
    for i in range(1, nloads):
        a(f"v_and_b32 v{vdst}, v{vdst}, v{vdst+i}")
    a(f"v_cmp_ne_u32 vcc, 1, v{vdst}")
    a(f"s_and_b64 vcc, vcc, {execmask}")
    a(f"s_cbranch_scc0 {name}_ok")
    a("s_cmp_lt_u32 s72, 20000")
    a(f"s_cbranch_scc0 {name}_ok")
    a("s_sleep 1")
    a(f"s_branch {name}_l")
    a.label(f"{name}_ok")

def gen_P3(a, kidx, VL):
    PITCH = 336
    XR, VO, LA = 14, 26, 29
    ACC = 32
    FB = 112
    def W(slot, i): return FB + slot * 36 + 4 * i
    def A(slot, i): return FB + slot * 36 + 20 + 4 * i
    a("s_mul_i32 s64, s48, 176")
    a("s_lshl_b32 s64, s64, 10")
    a(f"s_add_u32 s64, s64, {WS_ACT}")
    a("s_mul_i32 s65, s49, 220")
    a("s_lshl_b32 s65, s65, 10")
    a(f"s_add_u32 s65, s65, {WS_WF}")
    a("s_mul_i32 s66, s12, 6")
    a("s_add_u32 s66, s66, 20")
    a("s_lshl_b32 s66, s66, 10")
    a("s_lshl_b32 s67, s12, 12")
    a("s_add_u32 s68, s12, 16")
    a("s_lshl_b32 s68, s68, 10")
    a(f"v_mov_b32 v5, v{VL}")
    for i in range(1, 5): a(f"v_add_u32 v{5+i}, {ACT_T16}, v{4+i}")
    steps = [(66, 1024*i) for i in range(6)] + [(67, 1024*i) for i in range(4)] + [(68, 0)]
    out = []
    def ld(kind, st):
        sreg, off = steps[st]
        base = 65 if kind == "W" else 64
        a(f"s_add_u32 s69, s{base}, s{sreg}")
        if off >= 4096:
            a(f"s_add_u32 s69, s69, 4096"); off -= 4096
        for i in range(5 if kind == "W" else 4):
            r = W(st % 4, i) if kind == "W" else A(st % 4, i)
            a(f"buffer_load_dwordx4 {v(r,4)}, v{5+i}, s[24:27], s69 offen offset:{off} sc1")
            out.append((kind, st))
    def wait(st):
        idx = max([i for i, t in enumerate(out) if t[1] == st], default=-1)
        n = len(out) - 1 - idx
        a(f"s_waitcnt vmcnt({n})")
        del out[:idx+1]
    a("v_lshlrev_b32 v11, 2, v2")
    a("s_mul_i32 s15, s49, 5")
    a("s_lshr_b32 s15, s15, 1")
    a("s_lshl_b32 s15, s15, 8")
    a(f"s_add_u32 s71, s15, {FL_W}")
    a("s_mov_b32 s58, -1")
    a("s_movk_i32 s59, 0xfff")
    poll(a, "P3_pw", 11, 71, "s[58:59]", 14, nloads=3)
    a("s_lshl_b32 s15, s49, 2")
    a("s_add_u32 s15, s15, s12")
    a("s_lshl_b32 s15, s15, 2")
    a("s_lshl_b32 s70, s48, 8")
    a(f"s_add_u32 s70, s70, {FL_UO}")
    a("s_add_u32 s71, s70, s15")
    a("v_mov_b32 v10, 1")
    a("s_mov_b64 exec, 1")
    a("buffer_store_dword v10, v11, s[24:27], s71 offen sc1")
    a("s_mov_b64 exec, -1")
    trace(a, 13, 79)
    a("s_barrier")
    a("s_setprio 0")
    for st in range(4): ld("W", st)
    srd(a, 16, 62, 63, 2048*640*2)
    srd(a, 20, 74, 75, 2048*640*2)
    a("s_lshl_b32 s40, s48, 6")
    a("s_mul_i32 s40, s40, 1280")
    a("s_mul_i32 s15, s49, 160")
    a("s_add_u32 s40, s40, s15")
    a("s_mov_b32 s41, 0x1999999A")
    a("s_movk_i32 s42, 1280")
    a(f"s_movk_i32 s39, {PITCH}")
    T = ACC
    for r in range(3):
        a(f"v_add_u32 v{T}, {256*r - 256}, v0")
        a(f"v_mul_hi_u32 v{T+1}, v{T}, s41")
        a(f"v_mul_u32_u24 v{T+2}, 10, v{T+1}")
        a(f"v_sub_u32 v{T}, v{T}, v{T+2}")
        a(f"v_mul_lo_u32 v{T+2}, v{T+1}, s42")
        a(f"v_lshl_add_u32 v{VO+r}, v{T}, 4, v{T+2}")
        a(f"v_mul_lo_u32 v{T+2}, v{T+1}, s39")
        a(f"v_lshl_add_u32 v{LA+r}, v{T}, 5, v{T+2}")
    a(f"v_cmp_gt_u32 vcc, 64, v{T+1}")
    a(f"v_mov_b32 v{T+2}, 0x7fffffff")
    a("s_nop 0")
    a(f"v_cndmask_b32 v{VO+2}, v{T+2}, v{VO+2}, vcc")
    a(f"v_cndmask_b32 v{LA+2}, 0, v{LA+2}, vcc")
    for r in range(3):
        a(f"v_add_u32 v{LA+r}, {GR0}, v{LA+r}")
        a(f"buffer_load_dwordx4 {v(XR+4*r,4)}, v{VO+r}, s[16:19], s40 offen")
    a("s_lshl_b32 s15, s12, 3")
    a("s_lshl_b64 s[58:59], 0xff, s15")
    poll(a, "P3_pu", 11, 70, "s[58:59]", 10)
    out.clear()
    trace(a, 13, 79)
    for st in range(4): ld("A", st)
    def mm(st):
        wait(st)
        for nt in range(5):
            for tt in range(4):
                c = ACC + (nt * 4 + tt) * 4
                src = v(c, 4) if st > 0 else "0"
                a(f"v_mfma_f32_16x16x32_bf16 {v(c,4)}, {v(W(st%4,nt),4)}, {v(A(st%4,tt),4)}, {src}")
    for st in range(6):
        mm(st)
        ld("W", st + 4)
        if st + 4 < 6: ld("A", st + 4)
    trace(a, 13, 79)
    a("s_lshl_b32 s15, s12, 3")
    a("s_add_u32 s15, s15, 32")
    a("s_lshl_b64 s[58:59], 0xff, s15")
    poll(a, "P3_po", 11, 70, "s[58:59]", 10)
    out.clear()
    trace(a, 13, 79)
    for st in range(6, 10): ld("A", st)
    for st in range(6, 11):
        mm(st)
        if st == 6: ld("A", 10); ld("W", 10)
    trace(a, 13, 79)
    a("v_and_b32 v6, 15, v2")
    a("v_mul_lo_u32 v6, v6, s39")
    a("v_lshrrev_b32 v7, 4, v2")
    a("v_lshl_add_u32 v6, v7, 4, v6")
    a(f"s_mul_i32 s15, s12, {64*PITCH}")
    a(f"s_add_u32 s15, s15, {GR0}")
    a("v_add_u32 v6, s15, v6")
    a("s_nop 4")
    for nt in range(5):
        for tt in range(4):
            c = ACC + (nt * 4 + tt) * 4
            a(f"ds_write_b128 v6, {v(c,4)} offset:{16*tt*PITCH + 64*nt}")
    a("s_waitcnt lgkmcnt(0)")
    trace(a, 13, 79)
    a("s_barrier")
    trace(a, 13, 79)
    B = FB
    for r in range(3):
        for w in range(4):
            for hh in range(2):
                a(f"ds_read_b128 {v(B + r*32 + w*8 + hh*4, 4)}, v{LA+r} offset:{w*64*PITCH + 16*hh}")
    for r in range(3):
        a(f"s_waitcnt lgkmcnt({min(15, 8*(2-r))})")
        Br = B + r*32
        for i in range(8):
            a(f"v_add_f32 v{Br+i}, v{Br+i}, v{Br+8+i}")
            a(f"v_add_f32 v{Br+16+i}, v{Br+16+i}, v{Br+24+i}")
        for i in range(4):
            a(f"v_lshlrev_b32 v6, 16, v{XR+4*r+i}")
            a(f"v_and_b32 v7, 0xffff0000, v{XR+4*r+i}")
            a(f"v_add_f32 v{Br+2*i}, v{Br+2*i}, v6")
            a(f"v_add_f32 v{Br+2*i+1}, v{Br+2*i+1}, v7")
        for i in range(8):
            a(f"v_add_f32 v{Br+i}, v{Br+i}, v{Br+16+i}")
        for i in range(4):
            a(f"v_cvt_pk_bf16_f32 v{Br+8+i}, v{Br+2*i}, v{Br+2*i+1}")
        a(f"buffer_store_dwordx4 {v(Br+8,4)}, v{VO+r}, s[20:23], s40 offen")
```

```python
from asmlib import *
from layout import *
import os

SLOT = 13312
CPL = 12288
GR0 = 3 * SLOT
GSLOT = 10240
GRING = 3 * GSLOT
FLAGS = GR0 + 3 * 32768 + 4 * 6144
K2_LDS = FLAGS + 64
ASCR = GR0 + 86016
BIAS = 80.0
THR = 2.0 ** (60)
ACT_T16 = 44 * 1024

def gen_k2(a, kidx=2):
    kernel_begin(a, "k2_kernel")
    a("s_cmp_ge_u32 s2, 256")
    a("s_cbranch_scc1 K2_exit")
    prof_begin(a)
    a("s_load_dwordx2 s[4:5], s[0:1], 16")
    a("s_load_dwordx4 s[44:47], s[0:1], 40")
    a("s_load_dwordx2 s[8:9], s[0:1], 56")
    a("s_load_dwordx2 s[10:11], s[0:1], 80")
    a("s_load_dwordx2 s[62:63], s[0:1], 0")
    a("s_load_dwordx2 s[74:75], s[0:1], 64")
    a("v_lshrrev_b32 v1, 6, v0")
    a("v_and_b32 v2, 63, v0")
    a("v_readfirstlane_b32 s12, v1")
    a("s_and_b32 s13, s2, 7")
    a("s_lshl_b32 s13, s13, 2")
    a("s_lshr_b32 s15, s2, 6")
    a("s_add_u32 s13, s13, s15")
    a("s_bfe_u32 s14, s2, 0x30003")
    a("s_and_b32 s32, s13, 1")
    a("s_lshr_b32 s33, s13, 1")
    a("s_mul_i32 s33, s33, 5")
    a("s_mul_i32 s34, s32, 3")
    a("s_add_u32 s34, s34, s33")
    a("s_add_u32 s33, s33, 2")
    a("v_and_b32 v3, 31, v2")
    a("v_lshrrev_b32 v4, 5, v2")
    a("s_waitcnt lgkmcnt(0)")
    srd(a, 24, 10, 11, WS_SIZE)
    a("s_cmp_ge_u32 s12, 4")
    a("s_cbranch_scc1 K2_G")
    gen_A(a, kidx)
    a.label("K2_G")
    gen_G(a, kidx)
    a.label("K2_exit")
    a("s_endpgm")

def gen_A(a, kidx):
    R = Regs(12, 256)
    KA = R.alloc("ka"); KR = R.alloc("kr"); VA = R.alloc("va", 2)
    M = R.alloc("m", 4)
    QM = [R.alloc(f"qm{i}", 4, 4) for i in range(4)]
    QR = [R.alloc(f"qr{i}", 2) for i in range(4)]
    KM = [R.alloc(f"km{i}", 4, 4) for i in range(2)]
    KRm = [R.alloc(f"krm{i}", 2) for i in range(2)]
    VF = [R.alloc(f"vf{i}", 8, 4) for i in range(2)]
    S = [R.alloc(f"s{i}", 16, 4) for i in range(2)]
    P = [R.alloc(f"p{i}", 8, 4) for i in range(2)]
    O = [R.alloc(f"o{i}", 16, 4) for i in range(4)]
    X = R.alloc("x", 32, 4)
    a("s_and_b32 s35, s12, 1")
    a("s_lshr_b32 s36, s12, 1")
    a("s_lshl_b32 s37, s14, 2")
    a("s_lshl_b32 s15, s35, 1")
    a("s_add_u32 s37, s37, s15")
    a("s_add_u32 s38, s37, s36")
    a("s_xor_b32 s39, s38, 1")
    a("v_lshlrev_b32 v5, 2, v4")
    a("v_xor_b32 v5, v5, v3")
    a("v_lshlrev_b32 v5, 4, v5")
    a("v_lshl_add_u32 v6, v4, 15, v5")
    a("v_xor_b32 v7, 8, v3")
    a("v_lshlrev_b32 v7, 4, v7")
    a("s_lshl_b32 s15, s32, 3")
    a("v_add_u32 v7, s15, v7")
    a("s_lshl_b32 s40, s34, 5")
    a("s_add_u32 s41, s40, s39")
    a("s_add_u32 s40, s40, s38")
    a("s_lshl_b32 s40, s40, 10")
    a("s_lshl_b32 s41, s41, 10")
    a("s_lshl_b32 s42, s33, 5")
    a("s_add_u32 s43, s42, s39")
    a("s_add_u32 s42, s42, s38")
    a("s_lshl_b32 s42, s42, 10")
    a("s_lshl_b32 s43, s43, 10")
    for i in range(4):
        a(f"v_mov_b32 v{QR[i]}, 0")
        a(f"v_mov_b32 v{QR[i]+1}, 0")
    for i in range(4):
        a(f"buffer_load_dwordx4 {v(QM[i],4)}, v6, s[24:27], s{40+(i>>1)} offen offset:{512*(i&1)}")
    a("s_mov_b32 exec_hi, 0")
    for i in range(4):
        a(f"buffer_load_dwordx2 {v(QR[i],2)}, v7, s[24:27], s{42+(i>>1)} offen offset:{512*(i&1)}")
    a("s_mov_b32 exec_hi, -1")
    a(f"v_mov_b32 v{X}, 0x3f803f80")
    a(f"v_mov_b32 v{X+1}, 0")
    a(f"v_mov_b32 v{X+2}, 0x3f803f80")
    a(f"v_mov_b32 v{X+3}, 0")
    a("s_min_u32 s15, s12, 2")
    a(f"s_mul_i32 s15, s15, {SLOT}")
    a(f"s_add_u32 s15, s15, {CPL}")
    a("v_lshl_add_u32 v8, v2, 4, s15")
    a(f"ds_write_b128 v8, {v(X,4)}")
    a("s_lshl_b32 s15, s12, 2")
    a(f"s_add_u32 s15, s15, {FLAGS}")
    a(f"v_mov_b32 v8, s15")
    a(f"ds_write_b32 v8, v{X+1}")
    def lds_addrs(sb, sc):
        a("v_lshlrev_b32 v5, 2, v4")
        a("v_xor_b32 v5, v5, v3")
        a("v_lshlrev_b32 v5, 4, v5")
        a(f"v_lshl_add_u32 v{KA}, v4, 10, v5")
        a(f"v_add_u32 v{KA}, s{sb}, v{KA}")
        a("v_xor_b32 v7, 8, v3")
        a("v_lshlrev_b32 v7, 4, v7")
        a("s_lshl_b32 s15, s32, 3")
        a(f"s_add_u32 s15, s15, s{sb}")
        a("s_add_u32 s15, s15, 2048")
        a("v_add_u32 v8, s15, v7")
        a(f"v_lshl_add_u32 v9, v3, 4, s{sc}")
        a("v_cmp_gt_u32 vcc, 32, v2")
        a("v_bfe_u32 v10, v2, 2, 2")
        a("v_lshl_add_u32 v10, v4, 2, v10")
        a(f"v_cndmask_b32 v{KR}, v9, v8, vcc")
        a("v_bfe_u32 v8, v2, 4, 1")
        a("v_and_b32 v9, 3, v2")
        a("v_lshl_add_u32 v8, v8, 2, v9")
        a("v_lshrrev_b32 v9, 1, v8")
        a("v_cmp_lt_u32 vcc, 4, v8")
        a("v_and_b32 v11, 1, v8")
        a("s_nop 0")
        a("v_cndmask_b32 v9, v9, 3, vcc")
        a("v_cmp_eq_u32 s[50:51], 4, v8")
        a("v_mov_b32 v8, s32")
        a("s_nop 0")
        a("v_cndmask_b32 v11, v11, v8, s[50:51]")
        a("v_lshlrev_b32 v8, 2, v9")
        a("v_xor_b32 v8, v8, v10")
        a("v_lshlrev_b32 v8, 4, v8")
        a("v_lshl_add_u32 v8, v11, 3, v8")
        a("v_lshlrev_b32 v9, 10, v9")
        a(f"s_add_u32 s15, s{sb}, 3072")
        a("v_add_u32 v9, s15, v9")
        a(f"v_mov_b32 v11, s{sc}")
        a("v_cndmask_b32 v9, v9, v11, vcc")
        a(f"v_add_u32 v{VA}, v8, v9")
        a(f"v_xor_b32 v{VA+1}, 0x80, v{VA}")
    a("s_mul_i32 s48, s36, 6144")
    a(f"s_movk_i32 s49, {CPL}")
    lds_addrs(48, 49)
    for i in range(8):
        a(f"v_mov_b32 v{P[1]+i}, 0")
        a(f"v_mov_b32 v{VF[1]+i}, 0")
    for i in range(4):
        for j in range(16): a(f"v_mov_b32 v{O[i]+j}, 0")
    a("s_mov_b32 s48, 0")
    a("s_mov_b32 s49, 0")
    a(f"s_mov_b32 s52, {fhex(THR)}")
    a("s_waitcnt vmcnt(0) lgkmcnt(0)")
    a("s_barrier")
    prof_mark(a, 0)
    def rdK(kt):
        return [f"ds_read_b128 {v(KM[kt],4)}, v{KA} offset:{512*kt}", f"ds_read_b64 {v(KRm[kt],2)}, v{KR} offset:{512*kt}"]
    def rdV(kt):
        return [f"ds_read_b64_tr_b16 {v(VF[kt]+4*j+2*e,2)}, v{VA+e} offset:{512*kt+256*j}" for j in range(2) for e in range(2)]
    for ins in rdK(0) + rdK(1) + rdV(0): a(ins)
    a("s_waitcnt lgkmcnt(6)")
    TS = [S[0], S[1], X, X + 16]
    for i in range(4):
        a(f"v_mfma_f32_32x32x16_bf16 {v(TS[i],16)}, {v(KM[0],4)}, {v(QM[i],4)}, 0")
        a(f"v_mfma_f32_32x32x8_bf16 {v(TS[i],16)}, {v(KRm[0],2)}, {v(QR[i],2)}, {v(TS[i],16)}")
    a("s_nop 5")
    def set_m(i, src):
        a(f"v_cvt_pk_bf16_f32 v9, v{src}, v{src}")
        a("v_and_b32 v9, 0xffff0000, v9")
        a(f"v_sub_f32 v{src}, v{src}, v9")
        a(f"v_cvt_pk_bf16_f32 v{src}, -v9, -v{src}")
        a(f"v_and_b32 v{M+i}, 0xffff0000, v{src}")
        a(f"v_sub_f32 v{M+i}, v9, v{M+i}")
        a("s_mov_b32 exec_lo, 0")
        a(f"v_mov_b32 v{QR[i]}, v{src}")
        a("s_mov_b32 exec_lo, -1")
    for i in range(4):
        t = TS[i]
        a(f"v_max3_f32 v{t}, v{t}, v{t+1}, v{t+2}")
        for j in range(3, 15, 2):
            a(f"v_max3_f32 v{t}, v{t}, v{t+j}, v{t+j+1}")
        a(f"v_max_f32 v{t}, v{t}, v{t+15}")
        a(f"v_mov_b32 v{t+1}, v{t}")
    a("s_nop 0")
    for i in range(4):
        a(f"v_permlane32_swap_b32 v{TS[i]}, v{TS[i]+1}")
    for i in range(4):
        t = TS[i]
        a(f"v_max_f32 v{t}, v{t}, v{t+1}")
        a(f"v_add_f32 v{t}, {fhex(BIAS)}, v{t}")
        a(f"v_rndne_f32 v{t}, v{t}")
        a(f"v_cvt_pk_bf16_f32 v{M+i}, v{t}, v{t}")
        a(f"v_and_b32 v{M+i}, 0xffff0000, v{M+i}")
        a(f"v_sub_f32 v{t}, v{t}, v{M+i}")
        a(f"v_cvt_pk_bf16_f32 v{5+i}, -v{M+i}, -v{t}")
    a("s_mov_b32 exec_lo, 0")
    for i in range(4):
        a(f"v_mov_b32 v{QR[i]}, v{5+i}")
    a("s_mov_b32 exec_lo, -1")
    a(f"v_mfma_f32_32x32x16_bf16 {v(S[0],16)}, {v(KM[0],4)}, {v(QM[0],4)}, 0")
    a(f"v_mfma_f32_32x32x8_bf16 {v(S[0],16)}, {v(KRm[0],2)}, {v(QR[0],2)}, {v(S[0],16)}")
    for i in range(4):
        a(f"v_and_b32 v{5+i}, 0xffff0000, v{5+i}")
        a(f"v_sub_f32 v{M+i}, v{M+i}, v{5+i}")
    a("s_nop 2")
    a("s_waitcnt lgkmcnt(0)")
    prof_mark(a, 1)
    rescale = []
    trace_init(a, 250, 79)
    a.label("K2A_loop")
    for nn in range(16):
        n = nn & 7
        qi, kt = n & 3, n >> 2
        qn, ktn = (n + 1) & 3, ((n + 1) >> 2) & 1
        qp, ktp = (n - 1) & 3, ((n - 1) >> 2) & 1
        Sc, Sn, Pc, Pp = S[n & 1], S[(n + 1) & 1], P[n & 1], P[(n + 1) & 1]
        mf = [f"v_mfma_f32_32x32x16_bf16 {v(O[qp],16)}, {v(VF[ktp],4)}, {v(Pp,4)}, {v(O[qp],16)}",
              f"v_mfma_f32_32x32x16_bf16 {v(Sn,16)}, {v(KM[ktn],4)}, {v(QM[qn],4)}, 0",
              f"v_mfma_f32_32x32x8_bf16 {v(Sn,16)}, {v(KRm[ktn],2)}, {v(QR[qn],2)}, {v(Sn,16)}",
              f"v_mfma_f32_32x32x16_bf16 {v(O[qp],16)}, {v(VF[ktp]+4,4)}, {v(Pp+4,4)}, {v(O[qp],16)}"]
        e = [f"v_exp_f32 v{Sc+i}, v{Sc+i}" for i in range(16)]
        c = [f"v_cvt_pk_bf16_f32 v{Pc+i}, v{Sc+2*i}, v{Sc+2*i+1}" for i in range(8)]
        rd = {4: rdK(0), 5: rdV(0)[:2], 6: rdV(0)[2:], 7: rdK(1), 1: rdV(1)[:2], 2: rdV(1)[2:]}.get(n, [])
        post = {g: [] for g in range(4)}
        if n in (3, 7): post[0].append("s_waitcnt lgkmcnt(0)")
        if n == 3:
            post[1] += ["s_add_u32 s49, s49, 1"]
            post[2] += ["s_cmp_eq_u32 s49, 3"]
            post[3] += [f"s_movk_i32 s53, {SLOT}", f"s_cmovk_i32 s53, {(-2*SLOT) & 0xffff}", "s_cmov_b32 s49, 0"]
        if n == 4:
            post[0].append("BARTRACE")
            post[1].append(rd[0]); post[2].append(rd[1])
        elif n == 7:
            post[1].append(rd[0]); post[2].append(rd[1])
            if nn == 15: post[3] += ["s_add_u32 s48, s48, 1", "s_cmp_lt_u32 s48, 8"]
        elif rd:
            post[0].append(rd[0]); post[1].append(rd[1])
        for g in range(4):
            a(mf[g])
            for ins in post[g]:
                if ins == "BARTRACE":
                    trace(a, 250, 79)
                    a("s_cmp_eq_u32 s48, 7")
                    a(f"s_cbranch_scc1 K2A_nb{nn}")
                    a("s_barrier")
                    a.label(f"K2A_nb{nn}")
                    trace(a, 250, 79)
                else: a(ins)
            for ins in e[4*g:4*g+4]: a(ins)
            if g == 0 and nn in (8, 10) and not os.environ.get("K2_NOCHECK"):
                qa, qb_ = (n + 1) & 3, (n + 2) & 3
                a(f"v_max_f32 v5, v{O[qa]+8}, v{O[qb_]+8}")
                a("v_cmp_lt_f32 vcc, s52, v5")
                a("s_cmp_lg_u32 vcc_hi, 0")
                a(f"s_cbranch_scc1 K2A_rs{n}")
                a.label(f"K2A_rs{n}_ret")
                rescale.append((n, qa, qb_))
            if g == 0 and n == 4:
                for r_ in (KA, KR, VA, VA + 1): a(f"v_add_u32 v{r_}, s53, v{r_}")
            if g > 0:
                for ins in c[2*(g-1):2*(g-1)+2]: a(ins)
        for ins in c[6:8]: a(ins)
    a("s_cbranch_scc1 K2A_loop")
    a("s_nop 1")
    a(f"v_mfma_f32_32x32x16_bf16 {v(O[3],16)}, {v(VF[1],4)}, {v(P[1],4)}, {v(O[3],16)}")
    a(f"v_mfma_f32_32x32x16_bf16 {v(O[3],16)}, {v(VF[1]+4,4)}, {v(P[1]+4,4)}, {v(O[3],16)}")
    prof_mark(a, 2)
    SCR = 7168
    for i in range(4):
        a(f"v_mul_f32 v{5+i}, 0, v{O[0]+i}")
    for q in range(4):
        for j in range(12):
            if q == 0 and j < 4: continue
            a(f"v_fmac_f32 v{5+(j&3)}, 0, v{O[q]+j}")
    a(f"v_max3_f32 v9, v{O[0]+8}, v{O[1]+8}, v{O[2]+8}")
    a(f"v_max_f32 v9, v9, v{O[3]+8}")
    a(f"v_mul_f32 v9, {fhex(2.0**28)}, v9")
    a("v_fmac_f32 v5, 0, v9")
    a("v_add_f32 v5, v5, v6")
    a("v_add_f32 v7, v7, v8")
    a("v_cmp_u_f32 vcc, v5, v7")
    if os.environ.get("K2_FORCEFB"): a("s_mov_b64 vcc, -1")
    a("s_cbranch_vccnz K2A_fb")
    a.label("K2A_comb")
    trace(a, 250, 79)
    a(f"s_mul_i32 s15, s12, {SCR}")
    a(f"s_add_u32 s15, s15, {ASCR}")
    a("v_lshl_add_u32 v5, v2, 4, s15")
    a("v_lshl_add_u32 v6, v2, 2, s15")
    a("s_xor_b32 s15, s12, 2")
    a(f"s_mul_i32 s15, s15, {SCR}")
    a(f"s_add_u32 s15, s15, {ASCR}")
    a("v_lshl_add_u32 v7, v2, 4, s15")
    a("v_lshl_add_u32 v8, v2, 2, s15")
    a("s_waitcnt lgkmcnt(0)")
    for qd in range(3):
        a(f"ds_write_b128 v5, {v(O[2]+4*qd,4)} offset:{1024*qd}")
    a(f"ds_write_b32 v6, v{M+2} offset:6144")
    a(f"ds_write_b32 v6, v{M+3} offset:6400")
    for qd in range(3):
        a(f"ds_write_b128 v5, {v(O[3]+4*qd,4)} offset:{3072+1024*qd}")
    a("v_lshrrev_b32 v9, 4, v3")
    a(f"s_mov_b32 s15, {ACT_T16}")
    a("v_mul_lo_u32 v9, v9, s15")
    a("v_and_b32 v10, 15, v3")
    a("v_lshl_add_u32 v10, v10, 4, v9")
    a("v_lshl_add_u32 v9, v4, 8, v10")
    a("s_lshl_b32 s40, s38, 2")
    a("s_mul_i32 s40, s40, 44")
    a("s_lshr_b32 s15, s13, 1")
    a("s_add_u32 s41, s40, s15")
    a("s_lshl_b32 s41, s41, 10")
    a("s_lshl_b32 s15, s32, 9")
    a("s_add_u32 s41, s41, s15")
    a(f"s_add_u32 s41, s41, {WS_ACT}")
    a("s_lshl_b32 s42, s38, 5")
    a("s_add_u32 s42, s42, s13")
    a("s_lshl_b32 s42, s42, 9")
    a(f"s_add_u32 s42, s42, {WS_REM}")
    a("v_lshlrev_b32 v10, 4, v2")
    a("s_lshl_b32 s15, s12, 2")
    a(f"s_add_u32 s15, s15, {FLAGS}")
    a("v_mov_b32 v5, s15")
    a("v_xor_b32 v6, 8, v5")
    a("v_mov_b32 v11, 1")
    a("s_waitcnt lgkmcnt(0)")
    a("ds_write_b32 v5, v11")
    a.label("K2A_poll")
    a("ds_read_b32 v11, v6")
    a("s_waitcnt lgkmcnt(0)")
    a("v_cmp_eq_u32 vcc, 0, v11")
    a("s_cbranch_vccnz K2A_poll")
    trace(a, 250, 79)
    for i in range(2):
        a(f"ds_read_b32 v{X+24+i}, v8 offset:{6144+256*i}")
        for qd in range(3):
            a(f"ds_read_b128 {v(X+12*i+4*qd,4)}, v7 offset:{3072*i+1024*qd}")
    for i in range(2):
        a(f"s_waitcnt lgkmcnt({4*(1-i)})")
        mb = X + 24 + i
        a(f"v_max_f32 v5, v{M+i}, v{mb}")
        a(f"v_sub_f32 v6, v{M+i}, v5")
        a(f"v_sub_f32 v7, v{mb}, v5")
        a("v_cvt_i32_f32 v6, v6")
        a("v_cvt_i32_f32 v7, v7")
        a(f"v_ldexp_f32 v5, v{O[i]+8}, v6")
        a(f"v_ldexp_f32 v8, v{X+12*i+8}, v7")
        a("v_add_f32 v5, v5, v8")
        a("v_mov_b32 v8, v5")
        a("s_nop 1")
        a("v_permlane32_swap_b32 v5, v8")
        a("v_rcp_f32 v8, v8")
        a("s_nop 0")
        a("v_ldexp_f32 v6, v8, v6")
        a("v_ldexp_f32 v7, v8, v7")
        for j in range(12):
            a(f"v_mul_f32 v{O[i]+j}, v{O[i]+j}, v6")
        for j in range(12):
            a(f"v_fmac_f32 v{O[i]+j}, v{X+12*i+j}, v7")
        for j in range(4):
            a(f"v_cvt_pk_bf16_f32 v{S[i]+j}, v{O[i]+2*j}, v{O[i]+2*j+1}")
        a(f"buffer_store_dwordx4 {v(S[i],4)}, v9, s[24:27], s41 offen sc1")
        for j in range(2):
            a(f"v_cvt_pk_bf16_f32 v{S[0]+4+2*i+j}, v{O[i]+8+2*j}, v{O[i]+8+2*j+1}")
        if i == 0:
            a(f"s_add_u32 s41, s41, {2*ACT_T16}")
    a("s_mov_b32 exec_hi, 0")
    a(f"buffer_store_dwordx4 {v(S[0]+4,4)}, v10, s[24:27], s42 offen sc1")
    a("s_mov_b32 exec_hi, -1")
    trace(a, 250, 79)
    a("s_lshl_b32 s15, s38, 6")
    a("s_add_u32 s15, s15, s13")
    a("s_lshl_b32 s15, s15, 2")
    a(f"s_add_u32 s41, s15, {FL_UO + 128}")
    a("v_mov_b32 v5, 1")
    a("v_mov_b32 v6, 0")
    a("s_mov_b64 exec, 1")
    a("s_waitcnt vmcnt(0)")
    a("buffer_store_dword v5, v6, s[24:27], s41 offen sc1")
    a("s_mov_b64 exec, -1")
    trace(a, 250, 79)
    prof_mark(a, 3)
    trace_dump(a, 250, kidx, 24)
    prof_end(a, kidx, 24)
    for (n, qa, qb_) in rescale:
        a.label(f"K2A_rs{n}")
        for q in (qa, qb_):
            a(f"v_mov_b32 v5, v{O[q]+8}")
            a(f"v_mov_b32 v6, v{O[q]+8}")
            a("s_nop 1")
            a("v_permlane32_swap_b32 v5, v6")
            a("v_frexp_exp_i32_f32 v7, v6")
            a("v_cvt_f32_i32 v7, v7")
            a(f"v_add_f32 v7, {fhex(BIAS)}, v7")
            a("v_cmp_lt_f32 vcc, s52, v6")
            a(f"v_mov_b32 v8, v{M+q}")
            a("s_nop 0")
            a("v_cndmask_b32 v7, 0, v7, vcc")
            a(f"v_add_f32 v7, v7, v8")
            set_m(q, 7)
            a(f"v_sub_f32 v8, v8, v{M+q}")
            a("v_cvt_i32_f32 v8, v8")
            for j in range(16):
                a(f"v_ldexp_f32 v{O[q]+j}, v{O[q]+j}, v8")
        a("s_nop 1")
        a(f"s_branch K2A_rs{n}_ret")

    a.label("K2A_fb")
    a(f"s_mul_i32 s48, s12, {SCR}")
    a(f"s_add_u32 s48, s48, {ASCR}")
    a("s_add_u32 s49, s48, 6144")
    a("s_waitcnt lgkmcnt(0)")
    lds_addrs(48, 49)
    a(f"v_mov_b32 v{X}, 0x3f803f80")
    a(f"v_mov_b32 v{X+1}, 0")
    a(f"v_mov_b32 v{X+2}, 0x3f803f80")
    a(f"v_mov_b32 v{X+3}, 0")
    a("v_lshl_add_u32 v8, v2, 4, s49")
    a(f"ds_write_b128 v8, {v(X,4)}")
    a("v_lshlrev_b32 v11, 4, v2")
    a("s_mov_b32 exec_lo, 0")
    for i in range(4): a(f"v_mov_b32 v{QR[i]}, 0")
    a("s_mov_b32 exec_lo, -1")
    for i in range(4):
        a(f"v_mov_b32 v{M+i}, 0xff800000")
        for j in range(16): a(f"v_mov_b32 v{O[i]+j}, 0")
    a("s_mov_b32 s54, 0")
    a.label("K2A_fb_pass")
    a("s_lshl_b32 s15, s36, 4")
    for d, src, ty in ((56, 34, 80), (57, 33, 80), (58, 34, 160), (59, 33, 160)):
        a(f"s_add_u32 s{d}, s{src}, {ty}")
        a(f"s_lshl_b32 s{d}, s{d}, 5")
        a(f"s_add_u32 s{d}, s{d}, s15")
        a(f"s_lshl_b32 s{d}, s{d}, 10")
    a("s_mov_b32 s55, 0")
    a.label("K2A_fb_blk")
    for pl, (d, add) in enumerate(((56, 0), (56, 32768), (57, 0), (58, 0), (58, 32768), (59, 0))):
        a(f"s_add_u32 m0, s48, {1024*pl}")
        a(f"s_add_u32 s15, s{d}, {add}")
        a("buffer_load_dwordx4 v11, s[24:27], s15 offen lds")
    for d in (56, 57, 58, 59): a(f"s_add_u32 s{d}, s{d}, 1024")
    a("s_waitcnt vmcnt(0) lgkmcnt(0)")
    for ins in rdK(0) + rdK(1) + rdV(0) + rdV(1): a(ins)
    a("s_waitcnt lgkmcnt(0)")
    a("s_mov_b32 s60, 0")
    a.label("K2A_fb_kt")
    for q in range(4):
        a(f"v_mfma_f32_32x32x16_bf16 {v(S[0],16)}, {v(KM[0],4)}, {v(QM[q],4)}, 0")
        a(f"v_mfma_f32_32x32x8_bf16 {v(S[0],16)}, {v(KRm[0],2)}, {v(QR[q],2)}, {v(S[0],16)}")
        a("s_nop 15")
        a("s_cmp_eq_u32 s54, 0")
        a(f"s_cbranch_scc0 K2A_fb_e{q}")
        for j in range(0, 16, 2):
            a(f"v_max3_f32 v{M+q}, v{M+q}, v{S[0]+j}, v{S[0]+j+1}")
        a(f"s_branch K2A_fb_n{q}")
        a.label(f"K2A_fb_e{q}")
        for j in range(16): a(f"v_exp_f32 v{S[0]+j}, v{S[0]+j}")
        a("s_nop 0")
        for j in range(8): a(f"v_cvt_pk_bf16_f32 v{P[0]+j}, v{S[0]+2*j}, v{S[0]+2*j+1}")
        a("s_nop 1")
        a(f"v_mfma_f32_32x32x16_bf16 {v(O[q],16)}, {v(VF[0],4)}, {v(P[0],4)}, {v(O[q],16)}")
        a(f"v_mfma_f32_32x32x16_bf16 {v(O[q],16)}, {v(VF[0]+4,4)}, {v(P[0]+4,4)}, {v(O[q],16)}")
        a.label(f"K2A_fb_n{q}")
    for j in range(4): a(f"v_mov_b32 v{KM[0]+j}, v{KM[1]+j}")
    for j in range(2): a(f"v_mov_b32 v{KRm[0]+j}, v{KRm[1]+j}")
    for j in range(8): a(f"v_mov_b32 v{VF[0]+j}, v{VF[1]+j}")
    a("s_add_u32 s60, s60, 1")
    a("s_cmp_lt_u32 s60, 2")
    a("s_cbranch_scc1 K2A_fb_kt")
    a("s_add_u32 s55, s55, 1")
    a("s_cmp_lt_u32 s55, 16")
    a("s_cbranch_scc1 K2A_fb_blk")
    a("s_nop 15")
    a("s_cmp_eq_u32 s54, 0")
    a("s_cbranch_scc0 K2A_comb")
    for q in range(4):
        a(f"v_mov_b32 v5, v{M+q}")
        a(f"v_mov_b32 v6, v{M+q}")
        a("s_nop 1")
        a("v_permlane32_swap_b32 v5, v6")
        a("v_max_f32 v5, v5, v6")
        a("v_rndne_f32 v5, v5")
        a("v_cvt_pk_bf16_f32 v6, v5, v5")
        a("v_and_b32 v6, 0xffff0000, v6")
        a("v_sub_f32 v7, v5, v6")
        a("v_cvt_pk_bf16_f32 v8, -v6, -v7")
        a("v_and_b32 v7, 0xffff0000, v8")
        a(f"v_sub_f32 v{M+q}, v6, v7")
        a("s_mov_b32 exec_lo, 0")
        a(f"v_mov_b32 v{QR[q]}, v8")
        a("s_mov_b32 exec_lo, -1")
    a("s_mov_b32 s54, 1")
    a("s_branch K2A_fb_pass")

def gen_G(a, kidx):
    from kn import ln_scalars
    NJ = 4
    GS = 8192 * NJ
    NSCR = GR0 + 3 * GS
    D0 = 4
    R = Regs(12, 250)
    VL = R.alloc("vl")
    VW = R.alloc("vw", 2)
    BA = R.alloc("ba", 2)
    Z1 = R.alloc("z1", 12, 4)
    BS = R.alloc("bs", 2)
    VZ = R.alloc("vz", 2)
    BF = [[R.alloc(f"bf{ks}{t}", 4, 4) for t in range(4)] for ks in range(NJ)]
    AF = [[R.alloc(f"af{ks}{t}", 4, 4) for t in range(3)] for ks in range(NJ)]
    ACC = R.alloc("acc", 48, 4)
    WT = R.alloc("wt", 8, 4)
    def acc(tt, ft): return ACC + (tt * 3 + ft) * 4
    a("s_sub_u32 s12, s12, 4")
    a("s_setprio 1")
    trace_init(a, 13, 79)
    a(f"v_lshlrev_b32 v{VL}, 4, v2")
    a("s_and_b32 s15, s12, 1")
    a("s_add_u32 s35, s15, 1")
    a("s_mul_i32 s35, s35, 80")
    a("s_lshr_b32 s36, s12, 1")
    a("s_lshl_b32 s37, s36, 4")
    a("s_add_u32 s38, s34, s35")
    a("s_lshl_b32 s38, s38, 5")
    a("s_add_u32 s38, s38, s37")
    a("s_lshl_b32 s38, s38, 10")
    a(f"s_add_u32 s39, s38, {32768-1024}")
    a("s_add_u32 s40, s33, s35")
    a("s_lshl_b32 s40, s40, 5")
    a("s_add_u32 s40, s40, s37")
    a("s_lshl_b32 s40, s40, 10")
    a("s_sub_u32 s40, s40, 2048")
    a("s_mul_i32 s41, s12, 3072")
    a("s_mov_b32 s42, 0")
    def kv_ops():
        return ["s_mov_b32 m0, s41\ns_add_u32 s42, s42, 1\n" + f"buffer_load_dwordx4 v{VL}, s[24:27], s38 offen lds",
                f"buffer_load_dwordx4 v{VL}, s[24:27], s39 offen offset:1024 lds\ns_add_u32 s38, s38, 1024\ns_add_u32 s39, s39, 1024",
                f"buffer_load_dwordx4 v{VL}, s[24:27], s40 offen offset:2048 lds\ns_add_u32 s40, s40, 1024\ns_cmp_eq_u32 s42, 3\n"
                f"s_movk_i32 s15, {SLOT}\ns_cmovk_i32 s15, {(-2*SLOT) & 0xffff}\ns_cmov_b32 s42, 0\ns_add_u32 s41, s41, s15"]
    def issue_kv():
        for o in kv_ops(): a(o)
    for _ in range(2): issue_kv()
    NR = BF[0][0]
    NS = BF[1][0]
    a("v_lshlrev_b32 v7, 2, v4")
    a("v_xor_b32 v7, v7, v2")
    a("v_lshlrev_b32 v7, 4, v7")
    a("v_xor_b32 v8, 0x80, v7")
    a("v_lshlrev_b32 v9, 3, v3")
    a("v_lshrrev_b32 v5, 4, v2")
    a("v_and_b32 v6, 15, v2")
    a("s_mul_i32 s66, s12, 6144")
    a(f"s_add_u32 s66, s66, {NSCR}")
    def norm_load():
        a("s_mul_i32 s15, s64, 48")
        a("s_mul_i32 s67, s65, 3")
        a("s_add_u32 s15, s15, s67")
        a("s_lshl_b32 s67, s15, 10")
        a(f"s_add_u32 s68, s67, {WS_Z2R}")
        a("s_and_b32 s15, s65, 1")
        a("s_lshl_b32 s69, s15, 7")
        a("v_xor_b32 v10, s69, v7")
        a("v_xor_b32 v11, s69, v8")
        a("s_lshl_b32 s15, s64, 11")
        a(f"s_add_u32 s15, s15, {WS_ST}")
        for p in range(8):
            a(f"buffer_load_dwordx2 {v(NS+2*p,2)}, v9, s[24:27], s15 offen offset:{256*p}")
        for i in range(3):
            a(f"buffer_load_dwordx4 {v(NR+4*i,4)}, v{10+(i&1)}, s[24:27], s68 offen offset:{1024*i}")
    def norm_compute():
        for p in range(1, 8):
            a(f"v_add_f32 v{NS}, v{NS}, v{NS+2*p}")
            a(f"v_add_f32 v{NS+1}, v{NS+1}, v{NS+2*p+1}")
        ln_scalars(a, NS, NS+1, 768, NS+2, NS+3)
        a(f"v_mul_f32 v{NS+2}, v{NS+2}, v{NS+3}")
        for i in range(12):
            a(f"v_lshlrev_b32 v{NS+4}, 16, v{NR+i}")
            a(f"v_and_b32 v{NS+5}, 0xffff0000, v{NR+i}")
            a(f"v_fma_f32 v{NS+4}, v{NS+4}, v{NS+3}, v{NS+2}")
            a(f"v_fma_f32 v{NS+5}, v{NS+5}, v{NS+3}, v{NS+2}")
            a(f"v_cvt_pk_bf16_f32 v{NR+i}, v{NS+4}, v{NS+5}")
        a(f"v_add_u32 v10, s66, v{VL}")
        for i in range(3):
            a(f"ds_write_b128 v10, {v(NR+4*i,4)} offset:{1024*i}")
        a("v_bfe_u32 v11, v2, 2, 2")
        a("v_lshl_add_u32 v11, v5, 3, v11")
        a("v_lshlrev_b32 v11, 4, v11")
        a("v_and_b32 v10, 1, v2")
        a("v_lshl_add_u32 v11, v10, 9, v11")
        a("v_bfe_u32 v10, v2, 1, 1")
        a("v_lshl_add_u32 v11, v10, 3, v11")
        a("v_add_u32 v11, s66, v11")
        a(f"s_add_u32 s68, s67, {WS_Z2N}")
        a("s_waitcnt lgkmcnt(0)")
        for i in range(3):
            for e in range(2):
                a(f"ds_read_b64_tr_b16 {v(NR+4*i+2*e,2)}, v11 offset:{1024*i+64*e}")
        a("s_waitcnt lgkmcnt(0)")
        for i in range(3):
            a(f"buffer_store_dwordx4 {v(NR+4*i,4)}, v{VL}, s[24:27], s68 offen offset:{1024*i} sc1")
    a("s_lshl_b32 s15, s2, 2")
    a("s_add_u32 s15, s15, s12")
    a("s_lshr_b32 s64, s15, 4")
    a("s_and_b32 s65, s15, 15")
    norm_load()
    srd(a, 16, 44, 45, 2048 * 2048 * 2)
    srd(a, 20, 46, 47, 4096)
    srd(a, 28, 10, 11, WS_Z2N + 64*48*1024)
    a("s_and_b32 s48, s2, 3")
    a("s_lshl_b32 s48, s48, 3")
    a("s_add_u32 s48, s48, s14")
    a("s_bfe_u32 s49, s2, 0x10002")
    a("s_lshl_b32 s49, s49, 2")
    a("s_lshr_b32 s15, s2, 6")
    a("s_add_u32 s49, s49, s15")
    a("s_and_b32 s56, s12, 1")
    a("s_lshr_b32 s57, s12, 1")
    a("s_lshl_b32 s70, s49, 1")
    a("s_add_u32 s70, s70, s57")
    a("s_mul_i32 s50, s56, 48")
    a("s_mul_i32 s15, s70, 3")
    a("s_add_u32 s50, s50, s15")
    a("s_lshl_b32 s50, s50, 10")
    a(f"s_add_u32 s50, s50, {WS_Z2N}")
    a("s_lshl_b32 s15, s57, 10")
    a(f"v_add_u32 v{VZ}, s15, v{VL}")
    a("s_lshl_b32 s15, s57, 11")
    a("s_sub_u32 s15, 2048, s15")
    a(f"v_add_u32 v{VZ+1}, s15, v{VL}")
    a("s_lshl_b32 s51, s48, 18")
    a("s_lshl_b32 s15, s12, 16")
    a("s_add_u32 s51, s51, s15")
    a("v_lshrrev_b32 v10, 3, v2")
    a("v_and_b32 v11, 7, v2")
    for i in range(2):
        a(f"v_add_u32 v{VW+i}, {4*i}, v5")
        a(f"v_xor_b32 v{VW+i}, v{VW+i}, v11")
        a(f"v_lshlrev_b32 v{VW+i}, 4, v{VW+i}")
        a(f"v_lshl_add_u32 v{VW+i}, v10, 12, v{VW+i}")
    a(f"v_add_u32 v{VW+1}, {8*4096-1024}, v{VW+1}")
    a("s_lshl_b32 s52, s12, 11")
    a(f"s_add_u32 s52, s52, {GR0}")
    a("s_mov_b32 s54, 0")
    a(f"s_mov_b32 s77, {GS}")
    a(f"s_mov_b32 s78, {(-2*GS) & 0xffffffff}")
    def w_ops():
        o = []
        for sb in range(NJ):
            o.append(f"s_add_u32 m0, s52, {8192*sb}\n" + ("s_add_u32 s54, s54, 1\n" if sb == 0 else "s_add_u32 s51, s51, 128\n") + f"buffer_load_dwordx4 v{VW}, s[16:19], s51 offen lds")
            o.append(f"buffer_load_dwordx4 v{VW+1}, s[16:19], s51 offen offset:1024 lds")
        o[-1] += "\ns_add_u32 s51, s51, 128\ns_cmp_eq_u32 s54, 3\ns_cselect_b32 s15, s78, s77\ns_cmov_b32 s54, 0\ns_add_u32 s52, s52, s15"
        return o
    def z_ops(j):
        o = [f"buffer_load_dwordx4 {v(AF[j][ft],4)}, v{VZ+(ft>>1)}, s[28:31], s50 offen offset:{1024*(ft&1)} sc1" for ft in range(3)]
        o[-1] += f"\ns_add_u32 s50, s50, {96*1024}"
        return o
    a("v_lshrrev_b32 v10, 1, v6")
    a("s_lshl_b32 s15, s56, 2")
    a("v_or_b32 v11, s15, v5")
    a("v_xor_b32 v10, v10, v11")
    a("v_lshlrev_b32 v10, 4, v10")
    a("v_lshl_add_u32 v10, v6, 7, v10")
    a("s_lshl_b32 s15, s56, 12")
    a(f"v_add_u32 v10, s15, v10")
    a(f"v_xor_b32 v11, 0x1000, v10")
    a(f"v_add_u32 v{BA}, {GR0}, v10")
    a(f"v_add_u32 v{BA+1}, {GR0}, v11")
    for i in range(48): a(f"v_mov_b32 v{ACC+i}, 0")
    a("s_mov_b32 s76, 0")
    def flag_store(sreg):
        a("v_mov_b32 v10, 1")
        a("v_mov_b32 v11, 0")
        a("s_mov_b64 exec, 1")
        a(f"buffer_store_dword v10, v11, s[24:27], s{sreg} offen sc1")
        a("s_mov_b64 exec, -1")
    a("s_waitcnt vmcnt(14)")
    a("s_barrier")
    issue_kv()
    a("s_waitcnt vmcnt(3)")
    norm_compute()
    trace(a, 13, 79)
    a("s_barrier")
    trace(a, 13, 79)
    issue_kv()
    a("v_and_b32 v10, 1, v5")
    a("v_lshrrev_b32 v11, 1, v5")
    a("s_lshl_b32 s60, s48, 1")
    a("s_add_u32 s60, s60, s56")
    for ft in range(3):
        a(f"s_mul_i32 s15, s70, 3")
        a(f"s_add_u32 s15, s15, {ft}")
        if ft < 2: a("s_add_u32 s15, s15, s57")
        else:
            a("s_sub_u32 s15, s15, s57"); a("s_sub_u32 s15, s15, s57")
        a(f"s_and_b32 s58, s15, 1")
        a(f"s_lshl_b32 s58, s58, 1")
        a(f"s_lshr_b32 s15, s15, 1")
        a(f"s_mul_i32 s59, s60, 24")
        a(f"s_add_u32 s15, s15, s59")
        a(f"s_lshl_b32 s15, s15, 11")
        a(f"s_add_u32 s59, s15, {WS_Z1}")
        a(f"v_or_b32 v{WT}, s58, v10")
        a(f"v_lshlrev_b32 v{WT+1}, 2, v{WT}")
        a(f"v_xor_b32 v{WT+1}, v{WT+1}, v6")
        a(f"v_lshlrev_b32 v{WT+1}, 4, v{WT+1}")
        a(f"v_lshl_add_u32 v{WT+1}, v{WT}, 9, v{WT+1}")
        a(f"v_lshl_add_u32 v{WT+1}, v11, 3, v{WT+1}")
        for tt in range(2):
            a(f"buffer_load_dwordx2 {v(Z1+(tt*3+ft)*2,2)}, v{WT+1}, s[24:27], s59 offen offset:{256*tt}")
    a(f"v_lshlrev_b32 v{WT}, 1, v6")
    a("s_lshl_b32 s59, s60, 6")
    for tt in range(2):
        a(f"buffer_load_ushort v{BS+tt}, v{WT}, s[20:23], s59 offen offset:{32*tt}")
    a(f"s_lshl_b32 s80, s2, 2")
    a(f"s_add_u32 s80, s80, s12")
    a(f"s_cmp_lt_u32 s80, 880")
    sel(a, 55, 0, 0x40000000)
    a(f"s_min_u32 s80, s80, 879")
    a(f"s_mul_hi_u32 s81, s80, 0xCCCCCCD")
    a(f"s_mul_i32 s15, s81, 20")
    a(f"s_sub_u32 s82, s80, s15")
    a(f"s_mul_i32 s83, s81, 40")
    a(f"s_mov_b32 s6, 24"); a(f"s_mov_b32 s7, 4"); a(f"s_mov_b32 s61, 8")
    a(f"s_mul_i32 s15, s81, 160")
    a(f"s_sub_u32 s15, s15, {160*16 - 16}")
    a(f"s_cmp_ge_u32 s81, 16")
    a(f"s_cmov_b32 s83, s15"); a(f"s_cmovk_i32 s6, 80"); a(f"s_cmov_b32 s7, 40"); a(f"s_cmov_b32 s61, 4")
    a(f"s_lshl_b32 s15, s81, 5")
    a(f"s_sub_u32 s15, s15, 640")
    a(f"s_cmp_ge_u32 s81, 20")
    a(f"s_cmov_b32 s83, s15"); a(f"s_cmov_b32 s6, 8"); a(f"s_cmov_b32 s7, 4"); a(f"s_cmov_b32 s61, 16")
    a(f"s_cselect_b32 s44, s8, s4")
    a(f"s_cselect_b32 s45, s9, s5")
    sel(a, 46, 768*1280, 640*1280)
    a(f"s_and_b32 s45, s45, 0xffff")
    a(f"s_mov_b32 s47, 0x00020000")
    a(f"v_bfe_u32 v{WT+2}, v2, 2, 2")
    a(f"v_bfe_u32 v{WT+4}, v2, 4, 1")
    a(f"v_mul_lo_u32 v{WT+4}, v{WT+4}, s61")
    a(f"v_add_u32 v{WT+3}, v{WT+2}, v{WT+4}")
    a(f"v_mul_lo_u32 v{WT+4}, v4, s7")
    a(f"v_add3_u32 v{WT+3}, v{WT+3}, v{WT+4}, s83")
    a(f"s_movk_i32 s15, 1280")
    a(f"v_mul_lo_u32 v{WT+3}, v{WT+3}, s15")
    a(f"v_and_b32 v{WT+4}, 3, v2")
    a(f"v_lshl_add_u32 v{WT+3}, v{WT+4}, 4, v{WT+3}")
    a(f"s_lshl_b32 s71, s82, 6")
    a(f"s_mul_i32 s15, s6, 1280")
    a(f"s_add_u32 s72, s71, s15")
    a(f"s_sub_u32 s72, s72, 1024")
    a("s_add_u32 s73, s66, 4096")
    a(f"s_mov_b32 m0, s73")
    a(f"s_nop 0")
    a(f"buffer_load_dwordx4 v{WT+3}, s[44:47], s71 offen lds")
    a(f"buffer_load_dwordx4 v{WT+3}, s[44:47], s72 offen offset:1024 lds")
    a("s_lshl_b32 s15, s65, 6")
    a("s_add_u32 s15, s15, s64")
    a("s_lshl_b32 s15, s15, 2")
    a(f"s_add_u32 s71, s15, {FL_Z}")
    a("s_waitcnt vmcnt(13)")
    flag_store(71)
    trace(a, 13, 79)
    a("s_barrier")
    issue_kv()
    a("s_waitcnt vmcnt(4)")
    a("v_bfe_u32 v11, v2, 2, 2")
    a(f"v_lshl_add_u32 v10, v5, 3, v11")
    a(f"v_lshlrev_b32 v10, 6, v10")
    a(f"v_and_b32 v{WT+7}, 3, v2")
    a(f"v_lshl_add_u32 v10, v{WT+7}, 3, v10")
    a(f"v_add_u32 v10, s73, v10")
    for nn in range(2):
        for e in range(2):
            a(f"ds_read_b64_tr_b16 {v(WT+4*nn+2*e,2)}, v10 offset:{256*e+32*nn}")
    a(f"s_lshl_b32 s15, s82, 1")
    a(f"s_mul_i32 s15, s15, 44")
    a(f"s_add_u32 s15, s15, s81")
    a(f"s_lshl_b32 s15, s15, 10")
    a("s_add_u32 s15, s15, s55")
    a(f"s_add_u32 s71, s15, {WS_WF}")
    a(f"s_add_u32 s72, s71, {44*1024}")
    a(f"s_waitcnt lgkmcnt(0)")
    a(f"buffer_store_dwordx4 {v(WT,4)}, v{VL}, s[24:27], s71 offen sc1")
    a(f"buffer_store_dwordx4 {v(WT+4,4)}, v{VL}, s[24:27], s72 offen sc1")
    a("s_barrier")
    trace(a, 13, 79)
    issue_kv()
    for o in w_ops(): a(o)
    a("s_lshl_b32 s15, s70, 8")
    a(f"s_add_u32 s71, s15, {FL_Z}")
    a("v_lshlrev_b32 v11, 2, v2")
    a("s_mov_b32 s72, 0")
    a.label("K2G_poll")
    a("buffer_load_dword v10, v11, s[24:27], s71 offen sc1")
    a("s_add_u32 s72, s72, 1")
    a("s_waitcnt vmcnt(0)")
    a("v_cmp_ne_u32 vcc, 1, v10")
    a("s_cbranch_vccz K2G_ready")
    a("s_cmp_lt_u32 s72, 400")
    a("s_cbranch_scc0 K2G_self")
    a("s_sleep 4")
    a("s_branch K2G_poll")
    a.label("K2G_ready")
    trace(a, 13, 79)
    for j in range(NJ):
        for o in z_ops(j): a(o)
    a("s_lshl_b32 s15, s82, 6")
    a("s_add_u32 s15, s15, s81")
    a("s_lshl_b32 s15, s15, 2")
    a("s_add_u32 s15, s15, s55")
    a(f"s_add_u32 s71, s15, {FL_W}")
    flag_store(71)
    a("s_barrier")
    issue_kv()
    for o in w_ops(): a(o)
    a(f"s_mov_b32 s53, {D0}")
    def reads(j):
        return [f"ds_read_b128 {v(BF[j][t],4)}, v{BA+(t>>1)} offset:{8192*j + 2048*(t&1)}" for t in range(4)]
    def stage(kvw):
        for j in range(3):
            for ins in reads(j): a(ins)
        kvw = list(kvw)
        per = (len(kvw) + NJ - 2) // (NJ - 1)
        parts = [kvw[per*j:per*(j+1)] for j in range(NJ - 1)] + [[]]
        total = len(kvw) + 3 * NJ
        for j in range(NJ):
            a(f"s_waitcnt vmcnt({total - len(parts[j]) - 3}) lgkmcnt({[8, 8, 4, 0][j]})")
            todo = list(parts[j])
            for t in range(4):
                for ft in range(3):
                    if not os.environ.get("K2_NOGMFMA"):
                        a(f"v_mfma_f32_16x16x32_bf16 {v(acc(t,ft),4)}, {v(AF[j][ft],4)}, {v(BF[j][t],4)}, {v(acc(t,ft),4)}")
                    if j == 0 and ft == 0: a(reads(3)[t])
                    if todo and (t*3+ft) % 2 == 1: a(todo.pop(0))
            assert not todo
            for o in z_ops(j): a(o)
        a("s_add_u32 s76, s76, 1")
        a("s_cmp_eq_u32 s76, 3")
        a("s_cselect_b32 s15, s78, s77")
        a("s_cmov_b32 s76, 0")
        for r_ in (BA, BA+1): a(f"v_add_u32 v{r_}, s15, v{r_}")
    a("s_waitcnt vmcnt(12)")
    a("s_setprio 0")
    a.label("K2G_stage")
    trace(a, 13, 79)
    a("s_barrier")
    trace(a, 13, 79)
    stage(kv_ops() + w_ops())
    a("s_cmp_eq_u32 s53, 7")
    a("s_cbranch_scc1 K2G_wq")
    a("s_cmp_eq_u32 s53, 8")
    a("s_cbranch_scc1 K2G_wt")
    a.label("K2G_next")
    a("s_add_u32 s53, s53, 1")
    a("s_cmp_lt_u32 s53, 12")
    a("s_cbranch_scc1 K2G_stage")
    prof_mark(a, 0)
    a("s_setprio 1")
    a(f"v_add_u32 v10, s66, v{VL}")
    a("s_xor_b32 s15, s12, 1")
    a("s_mul_i32 s15, s15, 6144")
    a(f"s_add_u32 s15, s15, {NSCR}")
    a(f"v_add_u32 v11, s15, v{VL}")
    a("s_nop 4")
    for n in range(6):
        a(f"ds_write_b128 v10, {v(ACC+24+4*n,4)} offset:{1024*n}")
    a("s_waitcnt lgkmcnt(0)")
    a("s_barrier")
    issue_kv()
    PB = BF[0][0]
    for n in range(6):
        a(f"ds_read_b128 {v(PB+4*n,4)}, v11 offset:{1024*n}")
    prof_mark(a, 1)
    P = BF[2][0]
    a("s_waitcnt lgkmcnt(0)")
    for tt in range(2):
        a(f"v_lshlrev_b32 v{BS+tt}, 16, v{BS+tt}")
    for tt in range(2):
        for ft in range(3):
            A = acc(tt, ft); Z = Z1 + (tt*3+ft)*2; Q = PB + (tt*3+ft)*4
            for j in range(4): a(f"v_add_f32 v{A+j}, v{A+j}, v{BS+tt}")
            for j in range(4): a(f"v_add_f32 v{A+j}, v{A+j}, v{Q+j}")
            for j in range(2):
                a(f"v_lshlrev_b32 v8, 16, v{Z+j}")
                a(f"v_and_b32 v9, 0xffff0000, v{Z+j}")
                a(f"v_mul_f32 v{A+2*j}, v{A+2*j}, v8")
                a(f"v_mul_f32 v{A+2*j+1}, v{A+2*j+1}, v9")
                a(f"v_cvt_pk_bf16_f32 v{P + (4*tt + 2*ft if ft < 2 else 8 + 2*tt) + j}, v{A+2*j}, v{A+2*j+1}")
    a("s_mul_i32 s61, s49, 3")
    a("s_mul_i32 s43, s60, 88")
    a("s_add_u32 s61, s61, s43")
    a("s_lshl_b32 s15, s57, 1")
    a("s_add_u32 s15, s15, s61")
    a("s_lshl_b32 s15, s15, 10")
    a(f"s_add_u32 s59, s15, {WS_ACT + 20*1024}")
    a(f"buffer_store_dwordx4 {v(P,4)}, v{VL}, s[24:27], s59 offen sc1")
    a(f"s_add_u32 s59, s59, {ACT_T16}")
    a(f"buffer_store_dwordx4 {v(P+4,4)}, v{VL}, s[24:27], s59 offen sc1")
    a("s_mul_i32 s15, s57, 44")
    a("s_add_u32 s15, s15, s61")
    a("s_lshl_b32 s15, s15, 10")
    a(f"s_add_u32 s59, s15, {WS_ACT + 21*1024}")
    a(f"buffer_store_dwordx4 {v(P+8,4)}, v{VL}, s[24:27], s59 offen sc1")
    gen_P3(a, kidx, VL)
    trace(a, 13, 79)
    trace_dump(a, 13, kidx, 24)
    prof_end(a, kidx, 24)
    a.label("K2G_wq")
    a("v_lshlrev_b32 v11, 2, v2")
    a("s_mul_i32 s15, s49, 5")
    a("s_lshr_b32 s15, s15, 1")
    a("s_lshl_b32 s15, s15, 8")
    a(f"s_add_u32 s71, s15, {FL_W}")
    for i in range(3):
        a(f"buffer_load_dword v{WT+i}, v11, s[24:27], s71 offen offset:{256*i} sc1")
    a("s_branch K2G_next")
    a.label("K2G_wt")
    a(f"v_and_b32 v{WT}, v{WT}, v{WT+1}")
    a(f"v_and_b32 v{WT}, v{WT}, v{WT+2}")
    a(f"v_cmp_ne_u32 vcc, 1, v{WT}")
    a("s_and_b32 vcc_hi, vcc_hi, 0xfff")
    a("s_cmp_eq_u64 vcc, 0")
    a("s_cbranch_scc0 K2G_next")
    a("s_and_b32 s15, s48, 7")
    a("s_lshl_b32 s15, s15, 2")
    a("s_add_u32 s15, s15, s12")
    a("s_mul_i32 s15, s15, 7040")
    a("s_mul_i32 s71, s49, 220")
    a("s_lshl_b32 s71, s71, 10")
    a("s_add_u32 s71, s71, s15")
    a(f"s_add_u32 s71, s71, {WS_WF}")
    a("v_min_u32 v11, 54, v2")
    a("v_lshlrev_b32 v11, 7, v11")
    a(f"buffer_load_dword v{WT}, v11, s[24:27], s71 offen sc1")
    a("s_branch K2G_next")
    a.label("K2G_self")
    a("s_mov_b32 s64, 0")
    a("s_mov_b32 s65, s70")
    a.label("K2G_self_loop")
    norm_load()
    a("s_waitcnt vmcnt(0)")
    norm_compute()
    a("s_add_u32 s64, s64, 1")
    a("s_cmp_lt_u32 s64, 64")
    a("s_cbranch_scc1 K2G_self_loop")
    a("s_waitcnt vmcnt(0)")
    a("s_branch K2G_ready")

def poll(a, name, voff, soff, execmask, vdst, nloads=1, stride=256):
    a("s_mov_b32 s72, 0")
    a.label(f"{name}_l")
    for i in range(nloads):
        a(f"buffer_load_dword v{vdst+i}, v{voff}, s[24:27], s{soff} offen offset:{stride*i} sc1")
    a("s_add_u32 s72, s72, 1")
    a("s_waitcnt vmcnt(0)")
    for i in range(1, nloads):
        a(f"v_and_b32 v{vdst}, v{vdst}, v{vdst+i}")
    a(f"v_cmp_ne_u32 vcc, 1, v{vdst}")
    a(f"s_and_b64 vcc, vcc, {execmask}")
    a(f"s_cbranch_scc0 {name}_ok")
    a("s_cmp_lt_u32 s72, 20000")
    a(f"s_cbranch_scc0 {name}_ok")
    a("s_sleep 1")
    a(f"s_branch {name}_l")
    a.label(f"{name}_ok")

def gen_P3(a, kidx, VL):
    PITCH = 336
    XR, VO, LA = 14, 26, 29
    ACC = 32
    FB = 112
    def W(slot, i): return FB + slot * 36 + 4 * i
    def A(slot, i): return FB + slot * 36 + 20 + 4 * i
    a("s_mul_i32 s64, s48, 176")
    a("s_lshl_b32 s64, s64, 10")
    a(f"s_add_u32 s64, s64, {WS_ACT}")
    a("s_mul_i32 s65, s49, 220")
    a("s_lshl_b32 s65, s65, 10")
    a(f"s_add_u32 s65, s65, {WS_WF}")
    a("s_mul_i32 s66, s12, 6")
    a("s_add_u32 s66, s66, 20")
    a("s_lshl_b32 s66, s66, 10")
    a("s_lshl_b32 s67, s12, 12")
    a("s_add_u32 s68, s12, 16")
    a("s_lshl_b32 s68, s68, 10")
    a(f"v_mov_b32 v5, v{VL}")
    for i in range(1, 5): a(f"v_add_u32 v{5+i}, {ACT_T16}, v{4+i}")
    steps = [(66, 1024*i) for i in range(6)] + [(67, 1024*i) for i in range(4)] + [(68, 0)]
    out = []
    def ld(kind, st):
        sreg, off = steps[st]
        if kind == "A" and st == 10:
            a("s_lshl_b32 s69, s48, 14")
            a("s_lshl_b32 s15, s12, 12")
            a("s_add_u32 s69, s69, s15")
            a(f"s_add_u32 s69, s69, {WS_REM}")
            a("v_and_b32 v10, 15, v2")
            a("v_lshlrev_b32 v10, 4, v10")
            a("v_lshrrev_b32 v11, 4, v2")
            a("v_lshl_add_u32 v10, v11, 10, v10")
            for i in range(4):
                a(f"buffer_load_dwordx4 {v(A(st%4,i),4)}, v10, s[24:27], s69 offen offset:{512*(i&1) + 256*(i>>1)} sc1")
                out.append((kind, st))
            return
        base = 65 if kind == "W" else 64
        a(f"s_add_u32 s69, s{base}, s{sreg}")
        if off >= 4096:
            a(f"s_add_u32 s69, s69, 4096"); off -= 4096
        for i in range(5 if kind == "W" else 4):
            r = W(st % 4, i) if kind == "W" else A(st % 4, i)
            a(f"buffer_load_dwordx4 {v(r,4)}, v{5+i}, s[24:27], s69 offen offset:{off} sc1")
            out.append((kind, st))
    def wait(st):
        idx = max([i for i, t in enumerate(out) if t[1] == st], default=-1)
        n = len(out) - 1 - idx
        a(f"s_waitcnt vmcnt({n})")
        del out[:idx+1]
    a("v_lshlrev_b32 v11, 2, v2")
    a("s_mul_i32 s15, s49, 5")
    a("s_lshr_b32 s15, s15, 1")
    a("s_lshl_b32 s15, s15, 8")
    a(f"s_add_u32 s71, s15, {FL_W}")
    a("s_mov_b32 s58, -1")
    a("s_movk_i32 s59, 0xfff")
    poll(a, "P3_pw", 11, 71, "s[58:59]", 14, nloads=3)
    a("s_lshl_b32 s15, s49, 2")
    a("s_add_u32 s15, s15, s12")
    a("s_lshl_b32 s15, s15, 2")
    a("s_lshl_b32 s70, s48, 8")
    a(f"s_add_u32 s70, s70, {FL_UO}")
    a("s_add_u32 s71, s70, s15")
    a("v_mov_b32 v10, 1")
    a("s_mov_b64 exec, 1")
    a("buffer_store_dword v10, v11, s[24:27], s71 offen sc1")
    a("s_mov_b64 exec, -1")
    trace(a, 13, 79)
    a("s_barrier")
    a("s_setprio 0")
    for st in range(4): ld("W", st)
    srd(a, 16, 62, 63, 2048*640*2)
    srd(a, 20, 74, 75, 2048*640*2)
    a("s_lshl_b32 s40, s48, 6")
    a("s_mul_i32 s40, s40, 1280")
    a("s_mul_i32 s15, s49, 160")
    a("s_add_u32 s40, s40, s15")
    a("s_mov_b32 s41, 0x1999999A")
    a("s_movk_i32 s42, 1280")
    a(f"s_movk_i32 s39, {PITCH}")
    T = ACC
    for r in range(3):
        a(f"v_add_u32 v{T}, {256*r - 256}, v0")
        a(f"v_mul_hi_u32 v{T+1}, v{T}, s41")
        a(f"v_mul_u32_u24 v{T+2}, 10, v{T+1}")
        a(f"v_sub_u32 v{T}, v{T}, v{T+2}")
        a(f"v_mul_lo_u32 v{T+2}, v{T+1}, s42")
        a(f"v_lshl_add_u32 v{VO+r}, v{T}, 4, v{T+2}")
        a(f"v_mul_lo_u32 v{T+2}, v{T+1}, s39")
        a(f"v_lshl_add_u32 v{LA+r}, v{T}, 5, v{T+2}")
    a(f"v_cmp_gt_u32 vcc, 64, v{T+1}")
    a(f"v_mov_b32 v{T+2}, 0x7fffffff")
    a("s_nop 0")
    a(f"v_cndmask_b32 v{VO+2}, v{T+2}, v{VO+2}, vcc")
    a(f"v_cndmask_b32 v{LA+2}, 0, v{LA+2}, vcc")
    for r in range(3):
        a(f"v_add_u32 v{LA+r}, {GR0}, v{LA+r}")
        a(f"buffer_load_dwordx4 {v(XR+4*r,4)}, v{VO+r}, s[16:19], s40 offen")
    a("s_lshl_b32 s15, s12, 3")
    a("s_lshl_b64 s[58:59], 0xff, s15")
    poll(a, "P3_pu", 11, 70, "s[58:59]", 10)
    out.clear()
    trace(a, 13, 79)
    for st in range(4): ld("A", st)
    def mm(st):
        wait(st)
        amap = [0, 1, 2, 3]
        if st in (1, 4, 10):
            for p in (0, 2):
                for j in range(2):
                    a(f"v_swap_b32 v{A(st%4,p)+2+j}, v{A(st%4,p+1)+j}")
            a("s_nop 1")
            if st == 10: amap = [0, 2, 1, 3]
        for nt in range(5):
            for tt in range(4):
                c = ACC + (nt * 4 + tt) * 4
                src = v(c, 4) if st > 0 else "0"
                a(f"v_mfma_f32_16x16x32_bf16 {v(c,4)}, {v(W(st%4,nt),4)}, {v(A(st%4,amap[tt]),4)}, {src}")
    for st in range(6):
        mm(st)
        ld("W", st + 4)
        if st + 4 < 6: ld("A", st + 4)
    trace(a, 13, 79)
    a("s_lshl_b32 s15, s12, 3")
    a("s_add_u32 s15, s15, 32")
    a("s_lshl_b64 s[58:59], 0xff, s15")
    poll(a, "P3_po", 11, 70, "s[58:59]", 10)
    out.clear()
    trace(a, 13, 79)
    for st in range(6, 10): ld("A", st)
    for st in range(6, 11):
        mm(st)
        if st == 6: ld("A", 10); ld("W", 10)
    trace(a, 13, 79)
    a("v_and_b32 v6, 15, v2")
    a("v_mul_lo_u32 v6, v6, s39")
    a("v_lshrrev_b32 v7, 4, v2")
    a("v_lshl_add_u32 v6, v7, 4, v6")
    a(f"s_mul_i32 s15, s12, {64*PITCH}")
    a(f"s_add_u32 s15, s15, {GR0}")
    a("v_add_u32 v6, s15, v6")
    a("s_nop 4")
    for nt in range(5):
        for tt in range(4):
            c = ACC + (nt * 4 + tt) * 4
            a(f"ds_write_b128 v6, {v(c,4)} offset:{16*tt*PITCH + 64*nt}")
    a("s_waitcnt lgkmcnt(0)")
    trace(a, 13, 79)
    a("s_barrier")
    trace(a, 13, 79)
    B = FB
    for r in range(3):
        for w in range(4):
            for hh in range(2):
                a(f"ds_read_b128 {v(B + r*32 + w*8 + hh*4, 4)}, v{LA+r} offset:{w*64*PITCH + 16*hh}")
    for r in range(3):
        a(f"s_waitcnt lgkmcnt({min(15, 8*(2-r))})")
        Br = B + r*32
        for i in range(8):
            a(f"v_add_f32 v{Br+i}, v{Br+i}, v{Br+8+i}")
            a(f"v_add_f32 v{Br+16+i}, v{Br+16+i}, v{Br+24+i}")
        for i in range(4):
            a(f"v_lshlrev_b32 v6, 16, v{XR+4*r+i}")
            a(f"v_and_b32 v7, 0xffff0000, v{XR+4*r+i}")
            a(f"v_add_f32 v{Br+2*i}, v{Br+2*i}, v6")
            a(f"v_add_f32 v{Br+2*i+1}, v{Br+2*i+1}, v7")
        for i in range(8):
            a(f"v_add_f32 v{Br+i}, v{Br+i}, v{Br+16+i}")
        for i in range(4):
            a(f"v_cvt_pk_bf16_f32 v{Br+8+i}, v{Br+2*i}, v{Br+2*i+1}")
        a(f"buffer_store_dwordx4 {v(Br+8,4)}, v{VO+r}, s[20:23], s40 offen")
```

```python
import sys
HDR = """; @launch grid=(256,1,1) block=(1024,1,1) lds=0
.amdgcn_target "amdgcn-amd-amdhsa--gfx950"
.text
.globl mb_kernel
.p2align 8
.type mb_kernel,@function
mb_kernel:
"""
def wrap(body_fn, iters, nvgpr=128, pre=""):
    s = HDR
    s += """
    s_load_dwordx4 s[4:7], s[0:1], 0
    v_lshrrev_b32 v1, 6, v0
    s_nop 0
    v_readfirstlane_b32 s20, v1
    s_waitcnt lgkmcnt(0)
    s_mov_b32 s8, s4
    s_mov_b32 s9, s5
    s_mov_b32 s10, 0x1000000
    s_mov_b32 s11, 0x00020000
    s_mov_b32 s12, s6
    s_mov_b32 s13, s7
    s_mov_b32 s14, 0x1000000
    s_mov_b32 s15, 0x00020000
    v_lshlrev_b32 v2, 2, v0
"""
    for r in range(4, nvgpr):
        s += f"    buffer_load_dword v{r}, v2, s[12:15], 0 offen offset:{(r*16)%4096}\n"
    s += "    s_waitcnt vmcnt(0)\n"
    s += pre
    s += """
    s_barrier
    s_memtime s[24:25]
    s_memrealtime s[28:29]
    s_waitcnt lgkmcnt(0)
    s_mov_b32 s21, %d
L_loop:
""" % iters
    s += body_fn()
    s += """
    s_sub_u32 s21, s21, 1
    s_cmp_lg_u32 s21, 0
    s_cbranch_scc1 L_loop
L_end:
    s_nop 15
    s_nop 15
    s_memtime s[26:27]
    s_memrealtime s[30:31]
    s_waitcnt lgkmcnt(0)
    s_sub_u32 s26, s26, s24
    s_sub_u32 s30, s30, s28
    v_mov_b32 v4, s26
    v_mov_b32 v5, s30
    v_mov_b32 v6, 0
    v_mov_b32 v7, 0
    ; out index = (wg*waves_per_wg + wave)*16
    s_mul_i32 s22, s2, WPW
    s_add_u32 s22, s22, s20
    s_lshl_b32 s22, s22, 4
    v_mov_b32 v3, s22
    v_and_b32 v1, 63, v0
    v_cmp_eq_u32 vcc, 0, v1
    s_and_saveexec_b64 s[32:33], vcc
    buffer_store_dwordx4 v[4:7], v3, s[8:11], 0 offen
    s_waitcnt vmcnt(0)
    s_endpgm
.section .rodata,"a"
.p2align 6
.amdhsa_kernel mb_kernel
  .amdhsa_next_free_vgpr %d
  .amdhsa_next_free_sgpr 64
  .amdhsa_accum_offset %d
  .amdhsa_group_segment_fixed_size 0
  .amdhsa_kernarg_size 16
  .amdhsa_user_sgpr_count 2
  .amdhsa_user_sgpr_kernarg_segment_ptr 1
  .amdhsa_system_sgpr_workgroup_id_x 1
.end_amdhsa_kernel
""" % (nvgpr, nvgpr)
    return s

def b_exp():
    return "".join(f"    v_exp_f32 v{16+i}, v{48+i}\n" for i in range(16))
def b_fma():
    return "".join(f"    v_fma_f32 v{16+i}, v{48+i}, v{64+i}, v{80+i}\n" for i in range(16))
def b_cvt():
    return "".join(f"    v_cvt_pk_bf16_f32 v{16+i}, v{48+i}, v{64+i}\n" for i in range(16))
def b_max3():
    return "".join(f"    v_max3_f32 v{16+i}, v{48+i}, v{64+i}, v{80+i}\n" for i in range(16))
def b_pkfma():
    return "".join(f"    v_pk_fma_f32 v[{16+2*i}:{17+2*i}], v[{48+2*i}:{49+2*i}], v[{64+2*i}:{65+2*i}], v[{80+2*i}:{81+2*i}]\n" for i in range(8))*2
def b_mfma():
    return "".join(f"    v_mfma_f32_32x32x16_bf16 v[{16+16*i}:{31+16*i}], v[4:7], v[8:11], v[{16+16*i}:{31+16*i}]\n" for i in range(4))
def b_split():
    s = "    s_cbranch_vccnz L_b\n"
    s += b_exp()
    s += "    s_branch L_c\nL_b:\n"
    s += b_fma()*2
    s += "L_c:\n"
    return s
def attn_body(with_max=False, with_lds=False):
    def half(Scur, Snext, Pcur, Pprev):
        ops = []
        e = [f"    v_exp_f32 v{Scur+i}, v{Scur+i}\n" for i in range(16)]
        c = [f"    v_cvt_pk_bf16_f32 v{Pcur+i}, v{Scur+2*i}, v{Scur+2*i+1}\n" for i in range(8)]
        m = [f"    v_max3_f32 v100, v{Scur+2*i}, v{Scur+2*i+1}, v100\n" for i in range(8)] if with_max else []
        mf = [f"    v_mfma_f32_32x32x16_bf16 v[{Snext}:{Snext+15}], v[4:7], v[80:83], 0\n",
              f"    v_mfma_f32_32x32x16_bf16 v[64:79], v[88:91], v[{Pprev}:{Pprev+3}], v[64:79]\n",
              f"    v_mfma_f32_32x32x16_bf16 v[{Snext}:{Snext+15}], v[8:11], v[84:87], v[{Snext}:{Snext+15}]\n",
              f"    v_mfma_f32_32x32x16_bf16 v[64:79], v[92:95], v[{Pprev+4}:{Pprev+7}], v[64:79]\n"]
        for g in range(4):
            ops.append(mf[g])
            if with_max:
                ops += m[2*g:2*g+2]
            ops += e[4*g:4*g+4]
            if g > 0:
                ops += c[2*(g-1):2*(g-1)+2]
        ops += c[6:8]
        return "".join(ops)
    return half(16, 32, 48, 56) + half(32, 16, 56, 48)

def emit(name, fn, iters, wpw, nvgpr=128, pre=""):
    s = wrap(fn, iters, nvgpr, pre).replace("WPW", str(wpw))
    open(name, "w").write(s)

if __name__ == "__main__":
    specs = []
    for w in (1, 2, 3, 4):
        wpw = 4*w
        for nm, fn in (("exp", b_exp), ("fma", b_fma), ("cvt", b_cvt), ("max3", b_max3), ("pkfma", b_pkfma), ("mfma", b_mfma),
                       ("attn", lambda: attn_body(False)), ("attnmax", lambda: attn_body(True))):
            f = f"mb_{nm}_w{w}.s"
            emit(f, fn, 1000, wpw)
            specs.append(f"bench/{f}:256:{256*w}:100000")
    for w in (2, 4):
        wpw = 4*w
        f = f"mb_split_w{w}.s"
        pre = f"    s_cmp_ge_u32 s20, {wpw//2}\n    s_cselect_b64 vcc, -1, 0\n"
        emit(f, b_split, 1000, wpw, pre=pre)
        specs.append(f"bench/{f}:256:{256*w}:100000")
    print(" ".join(specs))
```

```python
import sys
from mb_gen import HDR
ARR = [4,4,4,4]
def attn_tile(Scur, Snext, Pcur, Pprev, ld):
    ops = []
    e = [f"    v_exp_f32 v{Scur+i}, v{Scur+i}\n" for i in range(16)]
    c = [f"    v_cvt_pk_bf16_f32 v{Pcur+i}, v{Scur+2*i}, v{Scur+2*i+1}\n" for i in range(8)]
    second = f"    v_mfma_f32_32x32x8_bf16 v[{Snext}:{Snext+15}], v[8:9], v[84:85], v[{Snext}:{Snext+15}]\n"
    mf = [f"    v_mfma_f32_32x32x16_bf16 v[{Snext}:{Snext+15}], v[4:7], v[80:83], 0\n",
          f"    v_mfma_f32_32x32x16_bf16 v[64:79], v[88:91], v[{Pprev}:{Pprev+3}], v[64:79]\n",
          second,
          f"    v_mfma_f32_32x32x16_bf16 v[64:79], v[92:95], v[{Pprev+4}:{Pprev+7}], v[64:79]\n"]
    seq = []
    for i in range(16):
        seq.append(e[i])
        if i >= 3 and i % 2 == 1: seq.append(c[(i-3)//2])
    seq.append(c[7])
    for g in range(4):
        ops.append(mf[g])
        if g < len(ld): ops.append(ld[g])
        budget = ARR[g] if g < 3 else 10**9
        while seq and budget > 0:
            x = seq.pop(0); ops.append(x); budget -= 8 if "exp" in x else 4
    return "".join(ops)
def gen(gemm=True, dma=True, lds=True, prio=0, sleep=0, reps=8, gprio=0, small=False):
    s = HDR
    s += """
    s_load_dwordx4 s[4:7], s[0:1], 0
    v_lshrrev_b32 v1, 6, v0
    s_nop 0
    v_readfirstlane_b32 s20, v1
    s_waitcnt lgkmcnt(0)
    s_mov_b32 s8, s4
    s_mov_b32 s9, s5
    s_mov_b32 s10, 0x1000000
    s_mov_b32 s11, 0x00020000
    s_mov_b32 s12, s6
    s_mov_b32 s13, s7
    s_mov_b32 s14, 0x1000000
    s_mov_b32 s15, 0x00020000
    v_lshlrev_b32 v2, 2, v0
"""
    for r in range(4, 240):
        s += f"    buffer_load_dword v{r}, v2, s[12:15], 0 offen offset:{(r*16)%4096}\n"
    s += """    s_waitcnt vmcnt(0)
    v_and_b32 v3, 63, v0
    v_lshlrev_b32 v3, 4, v3
    s_and_b32 s16, s2, 7
    s_lshl_b32 s16, s16, 21
    s_lshl_b32 s17, s20, 18
    s_add_u32 s16, s16, s17
    s_lshl_b32 s18, s20, 13
    s_barrier
    s_memtime s[24:25]
    s_memrealtime s[28:29]
    s_waitcnt lgkmcnt(0)
    s_cmp_ge_u32 s20, 4
    s_cbranch_scc1 L_gemm
"""
    if prio: s += f"    s_setprio {prio}\n"
    s += f"    s_mov_b32 s21, {16*reps}\nL_loop:\n"
    V = ["    ds_read_b128 v[104:107], v3\n", "    ds_read_b64_tr_b16 v[108:109], v3 offset:1024\n", "    ds_read_b64_tr_b16 v[110:111], v3 offset:2048\n", "    s_waitcnt lgkmcnt(3)\n"]
    for u in range(4):
        s += attn_tile(16, 32, 48, 56, V if lds else []) + attn_tile(32, 16, 56, 48, [])
    s += """
    s_sub_u32 s21, s21, 1
    s_cmp_lg_u32 s21, 0
    s_cbranch_scc1 L_loop
    s_branch L_end
L_gemm:
"""
    if gprio: s += f"    s_setprio {gprio}\n"
    s += f"    s_mov_b32 s21, {32*reps}\n    s_mov_b32 s19, s16\nL_loop2:\n"
    if gemm or dma:
        for j in range(6):
            if gemm:
                if small:
                    for k in range(2):
                        s += f"    v_mfma_f32_16x16x32_bf16 v[{16+16*j+4*k}:{19+16*j+4*k}], v[{120+4*(j%3)}:{123+4*(j%3)}], v[{132+4*(j//3)}:{135+4*(j//3)}], v[{16+16*j+4*k}:{19+16*j+4*k}]\n"
                else:
                    s += f"    v_mfma_f32_32x32x16_bf16 v[{16+16*j}:{31+16*j}], v[{120+4*(j%3)}:{123+4*(j%3)}], v[{132+4*(j//3)}:{135+4*(j//3)}], v[{16+16*j}:{31+16*j}]\n"
                if j < 2:
                    s += f"    ds_read_b128 v[{140+4*j}:{143+4*j}], v3 offset:{4096+1024*j}\n"
            if dma:
                s += f"    s_add_u32 m0, s18, {32768 + 1024*j}\n    s_add_u32 s19, s19, 1024\n    buffer_load_dwordx4 v3, s[12:15], s19 offen lds\n"
        if dma:
            s += f"    s_add_u32 m0, s18, {32768 + 1024*6}\n    s_add_u32 s19, s19, 1024\n    buffer_load_dwordx4 v3, s[12:15], s19 offen lds\n"
            s += "    s_waitcnt vmcnt(14)\n    s_and_b32 s19, s19, 0xffffff\n"
        if gemm: s += "    s_waitcnt lgkmcnt(0)\n"
    if sleep: s += f"    s_sleep {sleep}\n"
    s += """
    s_sub_u32 s21, s21, 1
    s_cmp_lg_u32 s21, 0
    s_cbranch_scc1 L_loop2
L_end:
    s_nop 15
    s_nop 15
    s_waitcnt vmcnt(0)
    s_memtime s[26:27]
    s_memrealtime s[30:31]
    s_waitcnt lgkmcnt(0)
    s_sub_u32 s26, s26, s24
    s_sub_u32 s30, s30, s28
    v_mov_b32 v4, s26
    v_mov_b32 v5, s30
    v_mov_b32 v6, 0
    v_mov_b32 v7, 0
    s_mul_i32 s22, s2, 8
    s_add_u32 s22, s22, s20
    s_lshl_b32 s22, s22, 4
    v_mov_b32 v3, s22
    v_and_b32 v1, 63, v0
    v_cmp_eq_u32 vcc, 0, v1
    s_and_saveexec_b64 s[32:33], vcc
    buffer_store_dwordx4 v[4:7], v3, s[8:11], 0 offen
    s_waitcnt vmcnt(0)
    s_endpgm
.section .rodata,"a"
.p2align 6
.amdhsa_kernel mb_kernel
  .amdhsa_next_free_vgpr 240
  .amdhsa_next_free_sgpr 64
  .amdhsa_accum_offset 240
  .amdhsa_group_segment_fixed_size 0
  .amdhsa_kernarg_size 16
  .amdhsa_user_sgpr_count 2
  .amdhsa_user_sgpr_kernarg_segment_ptr 1
  .amdhsa_system_sgpr_workgroup_id_x 1
.end_amdhsa_kernel
"""
    return s
specs = []
for an, arr in (("even", [40,40,40]), ("dense", [24,24,24]), ("pair", [24,56,24]), ("d28", [28,28,28])):
    ARR[:] = arr + [0]
    for nm, kw in (("idle", dict(gemm=False, dma=False)), ("big0", dict(dma=False)), ("big1", dict(dma=False, gprio=1)), ("sm0", dict(dma=False, small=True)), ("big0s", dict(dma=False, sleep=6)), ("big1s", dict(dma=False, gprio=1, sleep=6))):
        f = f"mb_S_{an}_{nm}.s"
        open(f, "w").write(gen(**kw))
        specs.append(f"bench/{f}:256:512:140000")
print(" ".join(specs))
```
